```python
import torch

def _softmax(x, axis=-1):
    return torch.softmax(x, dim=axis)
def _gelu(x):
    return torch.nn.functional.gelu(x, approximate="tanh")
def _silu(x):
    return torch.nn.functional.silu(x)
def _sigmoid(x):
    return torch.sigmoid(x)
def _layernorm(x, axis=-1, eps=1e-5):
    m = x.mean(dim=axis, keepdim=True)
    v = x.var(dim=axis, keepdim=True, unbiased=False)
    return (x - m) / torch.sqrt(v + eps)
def _scatter_add(tgt, idx, src, axis=0):
    return tgt.clone().index_add_(axis, idx, src)
def _segment_sum(src, seg, n):
    out = torch.zeros((n,) + src.shape[1:], dtype=src.dtype)
    return out.index_add_(0, seg, src)
def _pad(x, pw):
    flat = tuple(v for pair in reversed(pw) for v in pair)
    return torch.nn.functional.pad(x, flat)

kernel_name = 'concat_heads__gqa_block_cached__gqa_block_cached__near_ridge'

def setup_inputs():

    _w = (lambda a: (lambda t: t.to(torch.bfloat16) if t.is_floating_point() else t)(torch.as_tensor(a)))
    def _A_setup():
        B, Sq, D = 16, 128, 576
        Hq, Hkv, Sk, Dh = 32, 16, 1024, 128
        assert Hq % Hkv == 0, (Hq, Hkv)
        return {
            "x": _w((lambda *s: torch.randn(*s, dtype=torch.bfloat16) * 0.8)(B, Sq, D)),
            "k_cache": _w((lambda *s: torch.randn(*s, dtype=torch.bfloat16) * 0.8)(B, Hkv, Sk, Dh)),
            "v_cache": _w((lambda *s: torch.randn(*s, dtype=torch.bfloat16) * 0.05)(B, Hkv, Sk, Dh)),
            "wq": _w((lambda *s: torch.randn(*s, dtype=torch.bfloat16) * 0.8)(D, Hq * Dh) * (D ** -0.5)),
            "wo": _w((lambda *s: torch.randn(*s, dtype=torch.bfloat16) * 0.05)(Hq * Dh, D) * ((Hq * Dh) ** -0.5)),
        }
    _A_in = _A_setup()

    def _B_setup():
        B, Sq, D = 16, 128, 576
        Hq, Hkv, Sk, Dh = 32, 16, 1024, 128
        assert Hq % Hkv == 0, (Hq, Hkv)
        return {
            "x": _w((lambda *s: torch.randn(*s, dtype=torch.bfloat16) * 0.8)(B, Sq, D)),
            "k_cache": _w((lambda *s: torch.randn(*s, dtype=torch.bfloat16) * 0.8)(B, Hkv, Sk, Dh)),
            "v_cache": _w((lambda *s: torch.randn(*s, dtype=torch.bfloat16) * 0.05)(B, Hkv, Sk, Dh)),
            "wq": _w((lambda *s: torch.randn(*s, dtype=torch.bfloat16) * 0.8)(D, Hq * Dh) * (D ** -0.5)),
            "wo": _w((lambda *s: torch.randn(*s, dtype=torch.bfloat16) * 0.05)(Hq * Dh, D) * ((Hq * Dh) ** -0.5)),
        }
    _B_in = _B_setup()

    return {
        "A_x": _A_in["x"],
        "A_k_cache": _A_in["k_cache"],
        "A_v_cache": _A_in["v_cache"],
        "A_wq": _A_in["wq"],
        "A_wo": _A_in["wo"],
        "B_x": _B_in["x"],
        "B_k_cache": _B_in["k_cache"],
        "B_v_cache": _B_in["v_cache"],
        "B_wq": _B_in["wq"],
        "B_wo": _B_in["wo"],
    }

def reference(A_x, A_k_cache, A_v_cache, A_wq, A_wo, B_x, B_k_cache, B_v_cache, B_wq, B_wo):
    def _A_ref(x, k_cache, v_cache, wq, wo):
        B, Sq, D = x.shape
        Hq, Dh = 32, 128
        Hkv = k_cache.shape[1]
        rep = Hq // Hkv
        q = (lambda x, *d: x.permute(*d))((x @ wq).reshape(B, Sq, Hq, Dh), 0, 2, 1, 3)
        k = (lambda x, n, axis: torch.repeat_interleave(x, n, dim=axis))(k_cache, rep, axis=1)
        v = (lambda x, n, axis: torch.repeat_interleave(x, n, dim=axis))(v_cache, rep, axis=1)
        scores = torch.einsum("bhqd,bhkd->bhqk", q, k) * (Dh ** -0.5)
        p = _softmax(scores, axis=-1)
        o = torch.einsum("bhqk,bhkd->bhqd", p, v)
        return (lambda x, *d: x.permute(*d))(o, 0, 2, 1, 3).reshape(B, Sq, Hq * Dh) @ wo

    def _B_ref(x, k_cache, v_cache, wq, wo):
        B, Sq, D = x.shape
        Hq, Dh = 32, 128
        Hkv = k_cache.shape[1]
        rep = Hq // Hkv
        q = (lambda x, *d: x.permute(*d))((x @ wq).reshape(B, Sq, Hq, Dh), 0, 2, 1, 3)
        k = (lambda x, n, axis: torch.repeat_interleave(x, n, dim=axis))(k_cache, rep, axis=1)
        v = (lambda x, n, axis: torch.repeat_interleave(x, n, dim=axis))(v_cache, rep, axis=1)
        scores = torch.einsum("bhqd,bhkd->bhqk", q, k) * (Dh ** -0.5)
        p = _softmax(scores, axis=-1)
        o = torch.einsum("bhqk,bhkd->bhqd", p, v)
        return (lambda x, *d: x.permute(*d))(o, 0, 2, 1, 3).reshape(B, Sq, Hq * Dh) @ wo

    a = _A_ref(A_x, A_k_cache, A_v_cache, A_wq, A_wo)
    b = _B_ref(B_x, B_k_cache, B_v_cache, B_wq, B_wo)
    return torch.concatenate([a, b], axis=-1)
```

```python
import re
class I:
    __slots__=("t","rare","op","vr","vw","sr","sw","kind","passes","nop")
    def __init__(s,t,rare=False):
        s.t=t; s.rare=rare; s.nop=0
        s.parse()
    def parse(s):
        t=s.t.split(";")[0].strip()
        s.vr=set(); s.vw=set(); s.sr=set(); s.sw=set(); s.kind="other"; s.passes=0
        if t.endswith(":") or not t:
            s.op="label"; s.kind="label"; return
        m=re.match(r"(\S+)\s*(.*)",t)
        op=m.group(1); rest=m.group(2); s.op=op
        ops=[o.strip() for o in re.split(r",(?![^\[]*\])",rest)] if rest else []
        def regs(o):
            o=o.strip().lstrip("-")
            o=re.sub(r"^abs\((.*)\)$",r"\1",o)
            o=o.split()[0] if o else o
            mm=re.match(r"^([vas])\[(\d+):(\d+)\]$",o)
            if mm: return [(mm.group(1),i) for i in range(int(mm.group(2)),int(mm.group(3))+1)]
            mm=re.match(r"^([vas])(\d+)$",o)
            if mm: return [(mm.group(1),int(mm.group(2)))]
            if o=="vcc": return [("s",106),("s",107)]
            if o=="m0": return [("s",124)]
            if o=="exec": return [("s",126),("s",127)]
            return []
        def addr(o):
            for r in regs(o):
                (s.sr if r[0]=="s" else s.vr).add(r)
        def addw(o):
            for r in regs(o):
                (s.sw if r[0]=="s" else s.vw).add(r)
        if op.startswith("v_mfma"):
            s.kind="mfma"; s.passes=8 if "32x32" in op else 4
            addw(ops[0]); addr(ops[1]); addr(ops[2]); addr(ops[3])
        elif op.startswith("v_permlane"):
            s.kind="perm"
            for o in ops[:2]: addr(o); addw(o)
        elif op.startswith("v_cmp"):
            s.kind="valu"; addw(ops[0]); [addr(o) for o in ops[1:]]
        elif op.startswith("v_readfirstlane") or op.startswith("v_readlane"):
            s.kind="rdlane"; addw(ops[0]); [addr(o) for o in ops[1:]]
        elif op.startswith("v_"):
            s.kind="trans" if re.match(r"v_(exp|log|rcp|rsq|sqrt|sin|cos)_f32",op) else "valu"
            addw(ops[0]); [addr(o) for o in ops[1:]]
            if op.startswith("v_fmac") : addr(ops[0])
            if op.startswith("v_cndmask") and len(ops)==3: addr("vcc")
        elif op.startswith("buffer_load"):
            s.kind="vmem"
            if " lds" in t:
                s.kind="dma"; addr(ops[0]); addr(ops[1]); addr(ops[2]); addr("m0")
            else:
                addw(ops[0]); addr(ops[1]); addr(ops[2]); addr(ops[3])
        elif op.startswith("buffer_store"):
            s.kind="store"; [addr(o) for o in ops[:4]]
        elif op.startswith("ds_read"):
            s.kind="ds"; addw(ops[0]); addr(ops[1])
        elif op.startswith("ds_write"):
            s.kind="dsw"; [addr(o) for o in ops[:2]]
        elif op=="s_nop":
            s.kind="nop"
        elif op.startswith("s_"):
            s.kind="salu"
            if op.startswith(("s_cmp","s_cbranch","s_branch","s_waitcnt","s_barrier","s_endpgm","s_setprio")):
                [addr(o) for o in ops]
            else:
                addw(ops[0]); [addr(o) for o in ops[1:]]
    def states(s):
        if s.kind=="label": return 0
        if s.kind=="nop": return int(s.t.split()[1])+1
        return 1

def required(p,c):
    need=0
    VAL=("valu","trans","perm","rdlane")
    if p.kind in ("valu","trans","perm"):
        if c.kind=="mfma" and (p.vw & c.vr): need=max(need,2)
        if c.kind=="perm" and (p.vw & (c.vr|c.vw)): need=max(need,2)
        if c.kind=="rdlane" and (p.vw & c.vr): need=max(need,1)
        if p.kind=="trans" and c.kind in ("valu","perm","rdlane") and (p.vw & c.vr): need=max(need,1)
    if p.kind in VAL and p.sw:
        if c.kind in VAL and (p.sw & c.sr): need=max(need,2)
        if c.kind in ("vmem","dma","store") and (p.sw & c.sr): need=max(need,5)
    if p.kind=="mfma":
        big={8:12,4:8}[p.passes]
        if c.kind=="mfma":
            ops=c.t.split(None,1)[1]
            o=[x.strip() for x in re.split(r",(?![^\[]*\])",ops)]
            ab=set();
            tmp=I("v_mov_b32 v0, "+o[1]); ab|=tmp.vr
            tmp=I("v_mov_b32 v0, "+o[2]); ab|=tmp.vr
            tmp=I("v_mov_b32 v0, "+o[3]); cc=tmp.vr
            if p.vw & ab: need=max(need,big)
            if p.vw & cc:
                if not (cc==p.vw and c.passes==p.passes): need=max(need,{8:10,4:6}[p.passes])
            elif p.vw & c.vw: need=max(need,big)
        elif c.kind in VAL+("vmem","dma","store","ds","dsw"):
            if p.vw & (c.vr|c.vw): need=max(need,big)
        if c.kind in VAL:
            ops=p.t.split(None,1)[1]
            o=[x.strip() for x in re.split(r",(?![^\[]*\])",ops)]
            cc=I("v_mov_b32 v0, "+o[3]).vr
            if cc & c.vw: need=max(need,{8:7,4:3}[p.passes])
    if p.kind=="store" and ("x4" in p.op or "x3" in p.op):
        o=p.t.split(None,1)[1].split(",")[0]
        d=I("v_mov_b32 v0, "+o).vr
        if d & c.vw: need=max(need,2)
    if p.kind=="salu" and ("s",124) in p.sw and c.kind=="dma": need=max(need,1)
    return need

def fix_hazards(lst, ctx=None):
    full=(ctx or [])+lst
    base=len(ctx or [])
    for idx in range(base,len(full)):
        c=full[idx]
        if c.kind in("label","nop"): continue
        dist=c.nop
        j=idx-1
        while j>=0 and dist<25:
            p=full[j]
            if p.kind!="label":
                n=required(p,c)
                if n>dist:
                    c.nop+= n-dist; dist=n
            if not (p.rare and not c.rare):
                dist+=p.states()+p.nop
            j-=1
    return lst

def render(lst):
    out=[]
    for x in lst:
        n=x.nop
        while n>0:
            k=min(n,16); out.append("    s_nop %d"%(k-1)); n-=k
        out.append(x.t if x.kind=="label" else "    "+x.t)
    return "\n".join(out)+"\n"
```

```python
from asmlib import *
def vr(a,n=1,p="v"): return "%s%d"%(p,a) if n==1 else "%s[%d:%d]"%(p,a,a+n-1)
def gen_outproj():
    L=[]
    def e(t): L.append(I(t)); return L[-1]
    SRD_O=8; SRD_WP=12; SRD_OUT=16
    sW=20; sBLK=21; sRG=22; sNG=23; sOO=24; sWO=25; sLOOP=26; sT0=28; sT1=29; sT2=30
    NST=4; BUF=16
    VL0=4; VL1=5; VL2=6
    e("s_cmp_ge_u32 s2, 256"); e("s_cbranch_scc1 Lop_done")
    e("s_load_dwordx2 s[4:5], s[0:1], 80")
    e("s_load_dwordx2 s[6:7], s[0:1], 96")
    e("s_and_b32 s%d, s2, 7"%sT0); e("s_lshr_b32 s%d, s2, 3"%sT1)
    e("s_lshr_b32 s%d, s%d, 2"%(sBLK,sT0))
    e("s_and_b32 s%d, s%d, 3"%(sT0,sT0)); e("s_lshl_b32 s%d, s%d, 3"%(sT0,sT0))
    e("s_lshr_b32 s%d, s%d, 2"%(sT2,sT1)); e("s_add_u32 s%d, s%d, s%d"%(sRG,sT0,sT2))
    e("s_and_b32 s%d, s%d, 3"%(sNG,sT1))
    e("v_lshrrev_b32 v1, 6, v0"); e("v_and_b32 v2, 63, v0")
    e("v_readfirstlane_b32 s%d, v1"%sW)
    e("s_waitcnt lgkmcnt(0)")
    e("s_lshl_b32 s%d, s%d, 24"%(sT0,sBLK))
    e("s_add_u32 s%d, s6, s%d"%(SRD_O,sT0)); e("s_addc_u32 s%d, s7, 0"%(SRD_O+1)); e("s_and_b32 s%d, s%d, 0xffff"%(SRD_O+1,SRD_O+1))
    e("s_mov_b32 s%d, 16777216"%(SRD_O+2)); e("s_mov_b32 s%d, 0x20000"%(SRD_O+3))
    e("s_mul_i32 s%d, s%d, 4718592"%(sT0,sBLK)); e("s_add_u32 s%d, s%d, 33554432"%(sT0,sT0))
    e("s_add_u32 s%d, s6, s%d"%(SRD_WP,sT0)); e("s_addc_u32 s%d, s7, 0"%(SRD_WP+1)); e("s_and_b32 s%d, s%d, 0xffff"%(SRD_WP+1,SRD_WP+1))
    e("s_mov_b32 s%d, 4718592"%(SRD_WP+2)); e("s_mov_b32 s%d, 0x20000"%(SRD_WP+3))
    e("s_mov_b32 s%d, s4"%SRD_OUT); e("s_and_b32 s%d, s5, 0xffff"%(SRD_OUT+1))
    e("s_mov_b32 s%d, 4718592"%(SRD_OUT+2)); e("s_mov_b32 s%d, 0x20000"%(SRD_OUT+3))
    e("s_lshl_b32 s%d, s%d, 7"%(sT0,sRG)); e("s_lshl_b32 s%d, s%d, 5"%(sT1,sW)); e("s_add_u32 s%d, s%d, s%d"%(sT0,sT0,sT1)); e("s_lshl_b32 s%d, s%d, 12"%(sOO,sT0))
    e("s_mul_i32 s%d, s%d, 36"%(sT0,sT1)); e("s_mul_i32 s%d, s%d, 9"%(sT2,sNG)); e("s_add_u32 s%d, s%d, s%d"%(sT0,sT0,sT2)); e("s_lshl_b32 s%d, s%d, 10"%(sWO,sT0))
    e("v_lshlrev_b32 v%d, 4, v2"%VL0); e("v_add_u32 v%d, 0x1000, v%d"%(VL1,VL0)); e("v_add_u32 v%d, 0x2000, v%d"%(VL2,VL0))
    def wreg(st,nt): return BUF+52*st+4*nt
    def oreg(st,rt): return BUF+52*st+36+4*rt
    def ld_w(st,nt):
        e("buffer_load_dwordx4 %s, v%d, s[%d:%d], s%d offen offset:%d"%(vr(wreg(st,nt),4),(VL0,VL1,VL2)[nt//4],SRD_WP,SRD_WP+3,sWO,(nt%4)*1024))
    def ld_o(st,rt):
        e("buffer_load_dwordx4 %s, v%d, s[%d:%d], s%d offen offset:%d"%(vr(oreg(st,rt),4),VL0,SRD_O,SRD_O+3,sOO,rt*1024))
    def adv():
        e("s_add_u32 s%d, s%d, 4096"%(sOO,sOO)); e("s_add_u32 s%d, s%d, 36864"%(sWO,sWO))
    for st in range(NST):
        for rt in range(4): ld_o(st,rt)
        for nt in range(9): ld_w(st,nt)
        adv()
    for i in range(144): e("v_accvgpr_write_b32 a%d, 0"%i)
    def step(st,pref,nout):
        e("s_waitcnt vmcnt(%d)"%nout)
        for nt in range(9):
            for rt in range(4):
                a=(nt*4+rt)*4
                e("v_mfma_f32_16x16x32_bf16 %s, %s, %s, %s"%(vr(a,4,"a"),vr(wreg(st,nt),4),vr(oreg(st,rt),4),vr(a,4,"a")))
        if pref:
            for rt in range(4): ld_o(st,rt)
            for nt in range(9): ld_w(st,nt)
            adv()
    e("s_mov_b32 s%d, 0"%sLOOP)
    e("Lop_loop:")
    bs=len(L)
    for st in range(NST): step(st,True,39)
    e("s_add_u32 s%d, s%d, 1"%(sLOOP,sLOOP)); e("s_cmp_lt_u32 s%d, 7"%sLOOP); e("s_cbranch_scc1 Lop_loop")
    be=len(L)
    for st in range(NST): step(st,False,39-13*st)
    e("v_and_b32 v8, 15, v2"); e("v_lshrrev_b32 v9, 4, v2")
    e("v_mul_u32_u24 v8, 592, v8"); e("v_lshl_add_u32 v8, v9, 4, v8")
    e("s_mul_i32 s%d, s%d, 37888"%(sT0,sW)); e("v_add_u32 v8, s%d, v8"%sT0)
    for nt in range(9):
        for rt in range(4):
            a=(nt*4+rt)*4
            e("ds_write_b128 v8, %s offset:%d"%(vr(a,4,"a"),rt*16*592+nt*64))
    e("s_waitcnt lgkmcnt(0)"); e("s_barrier")
    e("v_lshrrev_b32 v9, 2, v0"); e("v_and_b32 v10, 3, v0")
    e("v_mul_u32_u24 v11, 592, v9"); e("v_lshl_add_u32 v11, v10, 4, v11")
    e("s_lshl_b32 s%d, s%d, 6"%(sT0,sRG)); e("v_add_u32 v12, s%d, v9"%sT0); e("v_mul_u32_u24 v12, 2304, v12"); e("v_lshl_add_u32 v12, v10, 3, v12")
    e("s_mul_i32 s%d, s%d, 1152"%(sT0,sBLK)); e("s_mul_i32 s%d, s%d, 288"%(sT1,sNG)); e("s_add_u32 s%d, s%d, s%d"%(sT0,sT0,sT1))
    e("v_add_u32 v13, %d, v11"%(2*37888))
    for q in range(9):
        b=16+16*(q%3)
        e("ds_read_b128 %s, v11 offset:%d"%(vr(b,4),q*64))
        e("ds_read_b128 %s, v11 offset:%d"%(vr(b+4,4),q*64+37888))
        e("ds_read_b128 %s, v13 offset:%d"%(vr(b+8,4),q*64))
        e("ds_read_b128 %s, v13 offset:%d"%(vr(b+12,4),q*64+37888))
        e("s_waitcnt lgkmcnt(0)")
        for i in range(4):
            e("v_add_f32 v%d, v%d, v%d"%(b+i,b+i,b+4+i)); e("v_add_f32 v%d, v%d, v%d"%(b+8+i,b+8+i,b+12+i))
        for i in range(4): e("v_add_f32 v%d, v%d, v%d"%(b+i,b+i,b+8+i))
        e("v_cvt_pk_bf16_f32 v%d, v%d, v%d"%(b+4,b,b+1)); e("v_cvt_pk_bf16_f32 v%d, v%d, v%d"%(b+5,b+2,b+3))
        e("buffer_store_dwordx2 %s, v12, s[%d:%d], s%d offen offset:%d"%(vr(b+4,2),SRD_OUT,SRD_OUT+3,sT0,q*32))
    e("Lop_done:"); e("s_endpgm")
    fix_hazards(L)
    body=L[bs:be]
    fix_hazards(body,ctx=L[be-40:be]); fix_hazards(L)
    return render(L)
```

```python
import sys, math
from asmlib import *

NAME="concat_heads__gqa_block_cached__gqa_block_cached__near_ridge"
C_SCALE = math.log2(math.e)/math.sqrt(128.0)
import struct
def f2u(x): return struct.unpack("<I",struct.pack("<f",x))[0]
T_RAW = 8.0/C_SCALE

LOOKAHEAD=5

class K:
    def __init__(s):
        s.l=[]; s.vm=[]
        s.lg=0
        s.lg_done=0
        s.rare=False
    def e(s,t):
        s.l.append(I(t,s.rare)); return s.l[-1]
    def vmem(s,t,tag):
        s.e(t); s.vm.append(tag)
    def wait_vm(s,tags,extra=""):
        last=-1
        for i,t in enumerate(s.vm):
            if t in tags: last=i
        n=len(s.vm)-1-last
        s.vm=s.vm[last+1:]
        assert n<=63
        return n
    def ds(s,t):
        s.e(t); s.lg+=1; return s.lg
    def wait_lg(s,idx):
        if idx<=s.lg_done: return
        n=s.lg-idx
        assert n<=15,n
        s.e("s_waitcnt lgkmcnt(%d)"%n); s.lg_done=idx

def vr(a,n=1): return "v%d"%a if n==1 else "v[%d:%d]"%(a,a+n-1)

OACC=0; QF=64; S0=96; S1=128; PR=160; POOL=176; KADDR=208; VADDR=216
MREF=220; MC=221; LSUM=222; LS=223; ALPHA=224; VMX=225; TMP=226; TMP2=227; TMP3=228; TMP4=229
XF=64; POOLQ=208; WADDR=240; VOFFW=244; VOFFK0=245; VOFFK1=246; VOFFV=247
T0=248;T1=249;T2=250;T3=251;T4=252;T5=253;T6=254;T7=255
SRD_X=8; SRD_WQ=12; SRD_K=16; SRD_V=20; SRD_O=24; SRD_WO=28; SRD_WP=32
sW=36; sW2K=37; sKOFF=38; sVOFF=39; sC=40; sT=41; sFLAG=42; sLOOP=43; sHQ=44; sQB=45; sB=46; sHKV=47; sBLK=48
sT0=50; sT1=51; sT2=52; sT3=53; sT4=54;sT5=55
PTR=64

def gen_attn():
    k=K(); e=k.e
    e("s_cmp_ge_u32 s2, 512"); e("s_cbranch_scc1 Lattn_done")
    e("s_load_dwordx16 s[%d:%d], s[0:1], 0"%(PTR,PTR+15))
    e("s_load_dwordx4 s[%d:%d], s[0:1], 64"%(PTR+16,PTR+19))
    e("s_load_dwordx2 s[%d:%d], s[0:1], 96"%(PTR+20,PTR+21))
    e("s_and_b32 s%d, s2, 7"%sT0)
    e("s_lshr_b32 s%d, s2, 3"%sT1)
    e("s_lshr_b32 s%d, s%d, 2"%(sBLK,sT0))
    e("s_and_b32 s%d, s%d, 3"%(sT2,sT0))
    e("s_lshl_b32 s%d, s%d, 2"%(sT2,sT2))
    e("s_and_b32 s%d, s%d, 3"%(sT3,sT1))
    e("s_add_u32 s%d, s%d, s%d"%(sB,sT2,sT3))
    e("s_lshr_b32 s%d, s%d, 2"%(sHKV,sT1))
    e("v_lshrrev_b32 v%d, 6, v0"%T0)
    e("v_and_b32 v%d, 63, v0"%T1)
    e("v_readfirstlane_b32 s%d, v%d"%(sW,T0))
    e("s_waitcnt lgkmcnt(0)")
    e("s_cmp_eq_u32 s%d, 0"%sBLK)
    for i in range(5):
        e("s_cselect_b32 s%d, s%d, s%d"%(90+2*i,PTR+2*i,PTR+10+2*i))
        e("s_cselect_b32 s%d, s%d, s%d"%(91+2*i,PTR+2*i+1,PTR+10+2*i+1))
    X,KP,VP,WQ,WO=90,92,94,96,98
    def srd(d,lo,hi,offs,size):
        if offs is None:
            e("s_mov_b32 s%d, s%d"%(d,lo)); e("s_and_b32 s%d, s%d, 0xffff"%(d+1,hi))
        else:
            e("s_add_u32 s%d, s%d, s%d"%(d,lo,offs)); e("s_addc_u32 s%d, s%d, 0"%(d+1,hi))
            e("s_and_b32 s%d, s%d, 0xffff"%(d+1,d+1))
        if isinstance(size,int): e("s_mov_b32 s%d, %d"%(d+2,size))
        else: e("s_mov_b32 s%d, s%d"%(d+2,size[0]))
        e("s_mov_b32 s%d, 0x20000"%(d+3))
    e("s_mul_i32 s%d, s%d, 147456"%(sT0,sB)); srd(SRD_X,X,X+1,sT0,147456)
    e("s_lshl_b32 s%d, s%d, 9"%(sT0,sHKV)); e("s_sub_u32 s%d, 4718592, s%d"%(sT1,sT0)); srd(SRD_WQ,WQ,WQ+1,sT0,(sT1,))
    e("s_lshl_b32 s%d, s%d, 4"%(sT0,sB)); e("s_add_u32 s%d, s%d, s%d"%(sT0,sT0,sHKV))
    e("s_lshl_b32 s%d, s%d, 18"%(sT1,sT0))
    srd(SRD_K,KP,KP+1,sT1,262144); srd(SRD_V,VP,VP+1,sT1,262144)
    e("s_lshl_b32 s%d, s%d, 24"%(sT1,sBLK)); srd(SRD_O,PTR+20,PTR+21,sT1,16777216)
    srd(SRD_WO,WO,WO+1,None,4718592)
    e("s_mul_i32 s%d, s%d, 4718592"%(sT1,sBLK)); e("s_add_u32 s%d, s%d, 33554432"%(sT1,sT1)); srd(SRD_WP,PTR+20,PTR+21,sT1,4718592)
    e("s_lshl_b32 s%d, s%d, 11"%(sW2K,sW))
    e("s_lshr_b32 s%d, s%d, 2"%(sHQ,sW))
    e("s_and_b32 s%d, s%d, 3"%(sQB,sW))
    e("s_mov_b32 s%d, 0x%08x"%(sC,f2u(C_SCALE))); e("s_mov_b32 s%d, 0x%08x"%(sT,f2u(T_RAW)))
    e("s_mov_b32 s%d, 0"%sFLAG)
    LANE=T1
    e("v_lshrrev_b32 v%d, 5, v%d"%(T2,LANE))
    e("v_bfe_u32 v%d, v%d, 4, 1"%(T3,LANE))
    e("v_lshlrev_b32 v%d, 2, v%d"%(T2,T2))
    e("v_add_u32 v%d, v%d, v%d"%(T2,T2,T3))
    e("v_mul_u32_u24 v%d, 4608, v%d"%(T2,T2))
    e("v_and_b32 v%d, 15, v%d"%(T3,LANE))
    e("v_lshl_add_u32 v%d, v%d, 1, v%d"%(T2,T3,T2))
    e("v_add_u32 v%d, 9216, v%d"%(T3,T2))
    e("s_lshr_b32 s%d, s%d, 1"%(sT1,sT0))
    e("s_and_b32 s%d, s%d, 1"%(sT2,sT0)); e("s_mul_i32 s%d, s%d, 18"%(sT2,sT2))
    e("s_mul_i32 s%d, s%d, 36864"%(sT3,sT1))
    WPK=POOLQ
    for f in range(3):
        e("s_add_u32 s%d, s%d, %d"%(sT4,sW,8*f)); e("s_min_u32 s%d, s%d, 17"%(sT4,sT4)); e("s_add_u32 s%d, s%d, s%d"%(sT4,sT4,sT2))
        e("s_lshl_b32 s%d, s%d, 5"%(sT5,sT4)); e("s_add_u32 s%d, s%d, s%d"%(sT5,sT5,sT3))
        for j in range(8):
            k.vmem("buffer_load_ushort v%d, v%d, s[%d:%d], s%d offen offset:%d"%(WPK+8*f+j, T3 if j>=4 else T2, SRD_WO,SRD_WO+3,sT5,(j&3)*1152),"wo")
        e("s_mul_i32 s%d, s%d, 36"%(56+f,sT1)); e("s_add_u32 s%d, s%d, s%d"%(56+f,56+f,sT4)); e("s_lshl_b32 s%d, s%d, 10"%(56+f,56+f))
    e("v_and_b32 v%d, 31, v%d"%(T4,LANE))
    e("v_lshrrev_b32 v%d, 5, v%d"%(T5,LANE))
    e("s_lshl_b32 s%d, s%d, 5"%(sT4,sQB))
    e("v_add_u32 v%d, s%d, v%d"%(T6,sT4,T4))
    e("v_mul_u32_u24 v%d, 1152, v%d"%(T6,T6))
    e("v_lshl_add_u32 v%d, v%d, 4, v%d"%(T6,T5,T6))
    for S in range(36):
        k.vmem("buffer_load_dwordx4 %s, v%d, s[%d:%d], 0 offen offset:%d"%(vr(XF+4*S,4),T6,SRD_X,SRD_X+3,32*S),"x")
    e("v_lshrrev_b32 v%d, 4, v%d"%(T6,LANE))
    e("v_and_b32 v%d, 15, v%d"%(T7,LANE))
    e("s_lshl_b32 s%d, s%d, 3"%(sT4,sW))
    e("v_add_u32 v%d, s%d, v%d"%(T0,sT4,T6))
    e("v_and_b32 v%d, 15, v%d"%(T2,T0)); e("v_xor_b32 v%d, v%d, v%d"%(T2,T2,T7))
    e("v_lshlrev_b32 v%d, 4, v%d"%(T2,T2)); e("v_lshl_add_u32 v%d, v%d, 8, v%d"%(VOFFK0,T0,T2))
    e("v_xor_b32 v%d, 64, v%d"%(VOFFK1,VOFFK0))
    e("v_lshlrev_b32 v%d, 2, v%d"%(T2,T6)); e("v_xor_b32 v%d, v%d, v%d"%(T2,T2,T7)); e("v_lshlrev_b32 v%d, 4, v%d"%(T2,T2))
    e("v_lshl_add_u32 v%d, v%d, 8, v%d"%(VOFFV,T0,T2))
    e("v_lshl_add_u32 v%d, v%d, 13, v%d"%(VOFFW,T0,T2))
    e("v_bfe_u32 v%d, v%d, 2, 2"%(T0,LANE))
    e("v_bfe_u32 v%d, v%d, 4, 1"%(T2,LANE))
    e("v_and_b32 v%d, 1, v%d"%(T3,LANE))
    e("v_lshl_add_u32 v%d, v%d, 1, v%d"%(T2,T2,T3))
    e("v_lshlrev_b32 v%d, 2, v%d"%(T3,T0))
    e("v_xor_b32 v%d, v%d, v%d"%(T2,T2,T3))
    e("v_lshlrev_b32 v%d, 4, v%d"%(T2,T2))
    e("v_bfe_u32 v%d, v%d, 1, 1"%(T3,LANE))
    e("v_lshl_add_u32 v%d, v%d, 3, v%d"%(T2,T3,T2))
    e("v_lshl_add_u32 v%d, v%d, 3, v%d"%(T3,T5,T0))
    e("v_lshl_add_u32 v%d, v%d, 8, v%d"%(T2,T3,T2))
    e("s_lshl_b32 s%d, s%d, 16"%(sT4,sHQ))
    e("v_add_u32 v%d, s%d, v%d"%(WADDR,sT4,T2))
    for b in range(1,4): e("v_xor_b32 v%d, %d, v%d"%(WADDR+b,64*b,WADDR))
    def dma_item(side,item):
        st=item&3
        base=(0 if side=='K' else 65536)+st*16384
        e("s_add_u32 m0, s%d, %d"%(sW2K,base))
        if item<=8:
            so=item*64*8192+(0 if side=='K' else 256)
            e("s_mov_b32 s%d, %d"%(sT4,so)); e("s_mov_b32 s%d, %d"%(sT5,so+31744))
            k.vmem("buffer_load_dwordx4 v%d, s[%d:%d], s%d offen lds"%(VOFFW,SRD_WQ,SRD_WQ+3,sT4),(side,item))
            k.vmem("buffer_load_dwordx4 v%d, s[%d:%d], s%d offen offset:1024 lds"%(VOFFW,SRD_WQ,SRD_WQ+3,sT5),(side,item))
        else:
            if side=='K':
                k.vmem("buffer_load_dwordx4 v%d, s[%d:%d], s%d offen lds"%(VOFFK0,SRD_K,SRD_K+3,sKOFF),(side,item))
                k.vmem("buffer_load_dwordx4 v%d, s[%d:%d], s%d offen offset:1024 lds"%(VOFFK1,SRD_K,SRD_K+3,sKOFF),(side,item))
                e("s_add_u32 s%d, s%d, 16384"%(sKOFF,sKOFF))
            else:
                k.vmem("buffer_load_dwordx4 v%d, s[%d:%d], s%d offen lds"%(VOFFV,SRD_V,SRD_V+3,sVOFF),(side,item))
                k.vmem("buffer_load_dwordx4 v%d, s[%d:%d], s%d offen offset:1024 lds"%(VOFFV,SRD_V,SRD_V+3,sVOFF),(side,item))
                e("s_add_u32 s%d, s%d, 16384"%(sVOFF,sVOFF))
    e("s_mov_b32 s%d, 0"%sKOFF); e("s_mov_b32 s%d, 0"%sVOFF)
    dma_item('K',0); dma_item('V',0); dma_item('K',1); dma_item('V',1); dma_item('K',2)
    for i in range(64): e("v_mov_b32 v%d, 0"%(OACC+i))
    n=k.wait_vm(["wo"]); e("s_waitcnt vmcnt(%d)"%n)
    e("v_lshlrev_b32 v%d, 4, v%d"%(T0,LANE))
    for f in range(3):
        for j in range(4):
            e("v_lshl_or_b32 v%d, v%d, 16, v%d"%(WPK+8*f+j,WPK+8*f+2*j+1,WPK+8*f+2*j))
        k.vmem("buffer_store_dwordx4 %s, v%d, s[%d:%d], s%d offen"%(vr(WPK+8*f,4),T0,SRD_WP,SRD_WP+3,56+f),"wps")
    return k

class M:
    def __init__(s,text,reads,gate,pool):
        s.text=text; s.reads=reads; s.gate=gate; s.pool=pool; s.done=None

def emit_stream(k,ms,events,state):
    nr=state.get('nr',0)
    for i,m in enumerate(ms):
        for ev in events.get(i,[]):
            if callable(ev): ev()
            else: k.e(ev)
        while nr<len(ms) and nr<=i+LOOKAHEAD and ms[nr].gate<=state['period']:
            if ms[nr].done is None:
                d=0
                for r in ms[nr].reads: d=k.ds(r)
                ms[nr].done=d if ms[nr].reads else 0
            nr+=1
        assert m.done is not None,(i,m.text)
        if m.done: k.wait_lg(m.done)
        k.e(m.text)
    for ev in events.get(len(ms),[]):
        if callable(ev): ev()
        else: k.e(ev)
    state['nr']=nr

def spread(items,slots):
    out={}
    n=len(items); ns=len(slots)
    pos=0
    for si,sl in enumerate(slots):
        tgt=round(n*(si+1)/ns)
        out.setdefault(sl,[]).extend(items[pos:tgt]); pos=tgt
    return out

def main():
    k=gen_attn(); e=k.e
    LANE=T1
    pool_ctr=[0]
    def pslot(base):
        s=pool_ctr[0]%8; pool_ctr[0]+=1; return base+4*s
    state={'period':-1,'nr':0}
    def dma_item(side,item): return _dma(k,side,item)
    ms=[]; ev={}
    def top(p,need,dmas):
        def f():
            n=k.wait_vm(need)
            e("s_waitcnt vmcnt(%d) lgkmcnt(0)"%n); k.lg_done=k.lg
            e("s_barrier")
            state['period']=p
            for sd,it in dmas: dma_item(sd,it)
        return f
    for p in range(9):
        st=p&3
        for s in range(4):
            for b in range(4):
                fr=pslot(POOLQ)
                off=st*16384+s*4096
                reads=["ds_read_b64_tr_b16 %s, v%d offset:%d"%(vr(fr,2),WADDR+b,off),
                       "ds_read_b64_tr_b16 %s, v%d offset:%d"%(vr(fr+2,2),WADDR+b,off+1024)]
                ms.append(M("v_mfma_f32_32x32x16_bf16 %s, %s, %s, %s"%(vr(OACC+16*b,16),vr(fr,4),vr(XF+4*(4*p+s),4),vr(OACC+16*b,16)),reads,p,fr))
        idx=max(0,16*p-4)
        ev.setdefault(idx,[]).append(top(p,[('K',p),('V',p),'x'],[('V',p+2),('K',p+3)]))
    ev.setdefault(16*9-4,[]).append(top(9,[('K',9)],[('V',11),('K',12)]))
    emit_stream(k,ms,ev,state)
    for i in range(32):
        e("v_cvt_pk_bf16_f32 v%d, v%d, v%d"%(QF+i,OACC+2*i,OACC+2*i+1))
    import os
    if os.environ.get("DEBUGQ"):
        e("s_lshl_b32 s%d, s%d, 4"%(sT0,sB)); e("s_add_u32 s%d, s%d, s%d"%(sT0,sT0,sHKV)); e("s_lshl_b32 s%d, s%d, 3"%(sT0,sT0)); e("s_add_u32 s%d, s%d, s%d"%(sT0,sT0,sW)); e("s_lshl_b32 s%d, s%d, 13"%(sT0,sT0))
        e("v_lshlrev_b32 v%d, 4, v%d"%(T0,LANE))
        for T in range(8):
            e("buffer_store_dwordx4 %s, v%d, s[%d:%d], s%d offen"%(vr(QF+4*T,4),T0,SRD_O,SRD_O+3,sT0)); e("s_add_u32 s%d, s%d, 1024"%(sT0,sT0))
        e("s_waitcnt vmcnt(0)"); e("s_endpgm")
    for i in range(64): e("v_mov_b32 v%d, 0"%(OACC+i))
    e("v_and_b32 v%d, 31, v%d"%(T0,LANE)); e("v_lshrrev_b32 v%d, 5, v%d"%(T2,LANE))
    e("v_and_b32 v%d, 15, v%d"%(T3,LANE)); e("v_xor_b32 v%d, v%d, v%d"%(T3,T3,T2))
    e("v_lshlrev_b32 v%d, 4, v%d"%(T3,T3)); e("v_lshl_add_u32 v%d, v%d, 8, v%d"%(KADDR,T0,T3))
    for T in range(1,8): e("v_xor_b32 v%d, %d, v%d"%(KADDR+T,32*T,KADDR))
    e("v_bfe_u32 v%d, v%d, 2, 2"%(T0,LANE))
    e("v_bfe_u32 v%d, v%d, 4, 1"%(T3,LANE))
    e("v_bfe_u32 v%d, v%d, 1, 1"%(T4,LANE))
    e("v_lshl_add_u32 v%d, v%d, 1, v%d"%(T3,T3,T4))
    e("v_lshlrev_b32 v%d, 2, v%d"%(T4,T0)); e("v_xor_b32 v%d, v%d, v%d"%(T3,T3,T4)); e("v_lshlrev_b32 v%d, 4, v%d"%(T3,T3))
    e("v_and_b32 v%d, 1, v%d"%(T4,LANE)); e("v_lshl_add_u32 v%d, v%d, 3, v%d"%(T3,T4,T3))
    e("v_lshl_add_u32 v%d, v%d, 2, v%d"%(T4,T2,T0))
    e("v_lshl_add_u32 v%d, v%d, 8, v%d"%(T3,T4,T3))
    e("v_add_u32 v%d, 0x10000, v%d"%(VADDR,T3))
    for b in range(1,4): e("v_xor_b32 v%d, %d, v%d"%(VADDR+b,64*b,VADDR))
    e("v_mov_b32 v%d, 0xf149f2ca"%MREF); e("v_mov_b32 v%d, 0"%LSUM); e("v_mov_b32 v%d, 0"%MC)
    for i in range(16): e("v_mov_b32 v%d, 0"%(PR+i))
    for i in range(32): e("v_mov_b32 v%d, 0"%(POOL+i))

    lblc=[0]
    def Sreg(t): return S0 if (t&1)==0 else S1
    def qk_ms(t,p):
        st=(9+t)&3; out=[]
        for kb in range(2):
            for T in range(8):
                fr=pslot(POOL)
                out.append(M("v_mfma_f32_32x32x16_bf16 %s, %s, %s, %s"%(vr(Sreg(t)+16*kb,16),vr(fr,4),vr(QF+4*T,4),
                     "0" if T==0 else vr(Sreg(t)+16*kb,16)),
                     ["ds_read_b128 %s, v%d offset:%d"%(vr(fr,4),KADDR+T,st*16384+kb*8192)],p,fr))
        return out
    def pv_ms(t,p,ss):
        st=(9+t)&3; out=[]
        for s in ss:
            for b in range(4):
                fr=pslot(POOL); off=st*16384+s*4096
                out.append(M("v_mfma_f32_32x32x16_bf16 %s, %s, %s, %s"%(vr(OACC+16*b,16),vr(fr,4),vr(PR+4*s,4),vr(OACC+16*b,16)),
                    ["ds_read_b64_tr_b16 %s, v%d offset:%d"%(vr(fr,2),VADDR+b,off),
                     "ds_read_b64_tr_b16 %s, v%d offset:%d"%(vr(fr+2,2),VADDR+b,off+2048)],p,fr))
        return out
    def w1(t):
        S=Sreg(t); it=[]
        it.append("v_max3_f32 v%d, v%d, v%d, v%d"%(VMX,S,S+1,S+2))
        it.append("v_max3_f32 v%d, v%d, v%d, v%d"%(TMP,S+3,S+4,S+5))
        for i in range(6,32,4):
            it.append("v_max3_f32 v%d, v%d, v%d, v%d"%(VMX,VMX,S+i,S+i+1))
            if i+3<32: it.append("v_max3_f32 v%d, v%d, v%d, v%d"%(TMP,TMP,S+i+2,S+i+3))
        it.append("v_max_f32 v%d, v%d, v%d"%(VMX,VMX,TMP))
        it.append("v_mov_b32 v%d, v%d"%(TMP,VMX))
        it.append("v_permlane32_swap_b32 v%d, v%d"%(VMX,TMP))
        it.append("v_max_f32 v%d, v%d, v%d"%(VMX,VMX,TMP))
        it.append("v_sub_f32 v%d, v%d, v%d"%(TMP,VMX,MREF))
        def dec():
            lblc[0]+=1; L="Ldec%d"%lblc[0]
            e("v_cmp_lt_f32 vcc, s%d, v%d"%(sT,TMP))
            e("s_cbranch_vccz %s"%L)
            k.rare=True
            e("v_max_f32 v%d, v%d, v%d"%(TMP,MREF,VMX))
            e("v_sub_f32 v%d, v%d, v%d"%(TMP2,MREF,TMP))
            e("v_mul_f32 v%d, s%d, v%d"%(TMP2,sC,TMP2))
            e("v_exp_f32 v%d, v%d"%(ALPHA,TMP2))
            e("v_mov_b32 v%d, v%d"%(MREF,TMP))
            e("v_mul_f32 v%d, s%d, v%d"%(MC,sC,TMP))
            e("s_mov_b32 s%d, 1"%sFLAG)
            k.rare=False
            e(L+":")
        it.append(dec)
        return it
    def wexp(t,kb):
        S=Sreg(t)+16*kb; it=[]
        for i in range(16):
            it.append("v_fma_f32 v%d, v%d, s%d, -v%d"%(S+i,S+i,sC,MC))
        f=it; x=["v_exp_f32 v%d, v%d"%(S+i,S+i) for i in range(16)]
        a=[]
        for i in range(16):
            if kb==0 and i==0: a.append("v_mov_b32 v%d, v%d"%(LS,S))
            else: a.append("v_add_f32 v%d, v%d, v%d"%(LS,LS,S+i))
        seq=[]
        for i in range(16+4):
            if i<16: seq.append(f[i])
            if 0<=i-2<16: seq.append(x[i-2])
            if 0<=i-4<16: seq.append(a[i-4])
        return seq
    def wcvt(t,kb):
        S=Sreg(t)+16*kb
        return ["v_cvt_pk_bf16_f32 v%d, v%d, v%d"%(PR+8*kb+i,S+2*i,S+2*i+1) for i in range(8)]
    def rescale():
        lblc[0]+=1; L="Lrs%d"%lblc[0]
        e("s_cmp_eq_u32 s%d, 0"%sFLAG)
        e("s_cbranch_scc1 %s"%L)
        k.rare=True
        e("s_nop 15")
        for i in range(64): e("v_mul_f32 v%d, v%d, v%d"%(OACC+i,ALPHA,OACC+i))
        e("v_mul_f32 v%d, v%d, v%d"%(LSUM,ALPHA,LSUM))
        e("s_mov_b32 s%d, 0"%sFLAG)
        e("s_nop 1")
        k.rare=False
        e(L+":")
    pool_ctr[0]=0
    st2={'period':9,'nr':0}
    m0=qk_ms(0,9)
    emit_stream(k,m0,{},st2)
    fb0=w1(0)+wexp(0,0); nb0=len(fb0)*12//16
    for x in fb0[:nb0]:
        x() if callable(x) else e(x)
    def iteration(t,tt,final):
        p=10+tt
        ms=[]; ev={}
        carried=iteration.carry
        ms+=carried
        doqk = not (final and tt==3)
        if doqk: ms+=qk_ms(tt+1,p)
        b0=len(ms)
        pv=pv_ms(tt,p,[0,1,2,3])
        ms+=pv[:12]
        iteration.carry=pv[12:]
        ms_all=ms+iteration.carry
        dm=[]
        if not final: dm=[('V',p+2),('K',p+3)]
        elif tt==0: dm=[('V',p+2)]
        def topf():
            need=[('K',p),('V',p-1)]
            n=k.wait_vm(need)
            e("s_waitcnt vmcnt(%d) lgkmcnt(0)"%n); k.lg_done=k.lg
            e("s_barrier")
            for sd,it in dm: dma_item(sd,it)
        ev[0]=[topf]
        for i,l in spread(iteration.prev_late,[1,2,3,4]).items(): ev.setdefault(i,[]).extend(l)
        a_slots=list(range(5,b0)) if doqk else []
        fa=wexp(tt,1)[:0]
        lateA = wcvt(tt,0)+wexp(tt,1)+wcvt(tt,1)+["v_add_f32 v%d, v%d, v%d"%(LSUM,LSUM,LS)]
        if doqk:
            ev.setdefault(5,[]).append(rescale)
            for i,l in spread(lateA,list(range(5,b0))).items(): ev.setdefault(i,[]).extend(l)
        else:
            ev.setdefault(4,[]).append(rescale)
            ev.setdefault(4,[]).extend(lateA)
        if doqk:
            fb=w1(tt+1)+wexp(tt+1,0)
            nb=len(fb)*12//16
            for i,l in spread(fb[:nb],list(range(b0+1,len(ms)))+[len(ms)]).items(): ev.setdefault(i,[]).extend(l)
            iteration.late=fb[nb:]
        else:
            iteration.late=[]
        iteration.prev_late=iteration.late
        stt={'period':p,'nr':0}
        nr=0
        for i,m in enumerate(ms):
            for x in ev.get(i,[]): x() if callable(x) else e(x)
            while nr<len(ms_all) and nr<=i+LOOKAHEAD:
                mm=ms_all[nr]
                if mm.done is None:
                    d=0
                    for r in mm.reads: d=k.ds(r)
                    mm.done=d
                nr+=1
            if m.done: k.wait_lg(m.done)
            e(m.text)
        for x in ev.get(len(ms),[]): x() if callable(x) else e(x)
    dummy=[]
    for b in range(4):
        fr=pslot(POOL)
        mm=M("v_mfma_f32_32x32x16_bf16 %s, %s, %s, %s"%(vr(OACC+16*b,16),vr(fr,4),vr(PR+12,4),vr(OACC+16*b,16)),[],0,fr); mm.done=0
        dummy.append(mm)
    iteration.carry=dummy; iteration.prev_late=fb0[nb0:]
    for i in range(16): e("v_mov_b32 v%d, 0"%(POOL+i))
    e("s_mov_b32 s%d, 0"%sLOOP)
    pre_len=len(k.l)
    e("Lmain:")
    body_start=len(k.l)
    vm_entry=list(k.vm)
    prev_late_entry=iteration.prev_late
    for tt in range(4): iteration(None,tt,False)
    e("s_add_u32 s%d, s%d, 1"%(sLOOP,sLOOP)); e("s_cmp_lt_u32 s%d, 3"%sLOOP); e("s_cbranch_scc1 Lmain")
    body_end=len(k.l)
    rel=lambda l:[(a,b) if isinstance((a,b),tuple) else None for a,b in l]
    assert len(k.vm)==len(vm_entry),(k.vm,vm_entry)
    k.vm=list(vm_entry)
    for tt in range(4): iteration(None,tt,True)
    for m in iteration.carry:
        if m.done: k.wait_lg(m.done)
        e(m.text)
    e("v_mov_b32 v%d, v%d"%(TMP,LSUM))
    e("v_permlane32_swap_b32 v%d, v%d"%(LSUM,TMP))
    e("v_add_f32 v%d, v%d, v%d"%(LSUM,LSUM,TMP))
    e("v_rcp_f32 v%d, v%d"%(LSUM,LSUM))
    e("v_bfe_u32 v%d, v%d, 4, 1"%(T0,LANE)); e("v_lshrrev_b32 v%d, 5, v%d"%(T2,LANE)); e("v_and_b32 v%d, 15, v%d"%(T3,LANE))
    e("v_lshlrev_b32 v%d, 4, v%d"%(T3,T3)); e("v_lshl_add_u32 v%d, v%d, 8, v%d"%(T3,T2,T3)); e("v_lshl_add_u32 v%d, v%d, 10, v%d"%(T3,T0,T3))
    e("s_lshl_b32 s%d, s%d, 1"%(sT0,sB)); e("s_lshr_b32 s%d, s%d, 1"%(sT1,sQB)); e("s_add_u32 s%d, s%d, s%d"%(sT0,sT0,sT1)); e("s_lshl_b32 s%d, s%d, 19"%(sT0,sT0))
    e("s_lshl_b32 s%d, s%d, 1"%(sT1,sHKV)); e("s_add_u32 s%d, s%d, s%d"%(sT1,sT1,sHQ)); e("s_lshl_b32 s%d, s%d, 14"%(sT1,sT1)); e("s_add_u32 s%d, s%d, s%d"%(sT0,sT0,sT1))
    e("s_and_b32 s%d, s%d, 1"%(sT1,sQB)); e("s_lshl_b32 s%d, s%d, 11"%(sT1,sT1)); e("s_add_u32 s%d, s%d, s%d"%(sT0,sT0,sT1))
    for b in range(4):
        for i in range(16): e("v_mul_f32 v%d, v%d, v%d"%(OACC+16*b+i,LSUM,OACC+16*b+i))
        for i in range(8): e("v_cvt_pk_bf16_f32 v%d, v%d, v%d"%(S0+8*b+i,OACC+16*b+2*i,OACC+16*b+2*i+1))
        for t in range(2):
            k.vmem("buffer_store_dwordx4 %s, v%d, s[%d:%d], s%d offen offset:%d"%(vr(S0+8*b+4*t,4),T3,SRD_O,SRD_O+3,sT0,512*t),"o")
        if b<3: e("s_add_u32 s%d, s%d, 4096"%(sT0,sT0))
    e("Lattn_done:"); e("s_endpgm")
    L=k.l
    fix_hazards(L)
    body=L[body_start:body_end]
    for _ in range(2):
        fix_hazards(body, ctx=L[body_end-40:body_end])
    fix_hazards(L)
    return render(L)

def _dma(k,side,item):
    e=k.e
    st=item&3
    base=(0 if side=='K' else 65536)+st*16384
    e("s_add_u32 m0, s%d, %d"%(sW2K,base))
    if item<=8:
        so=item*64*8192+(0 if side=='K' else 256)
        e("s_mov_b32 s%d, %d"%(sT4,so)); e("s_mov_b32 s%d, %d"%(sT5,so+31744))
        k.vmem("buffer_load_dwordx4 v%d, s[%d:%d], s%d offen lds"%(VOFFW,SRD_WQ,SRD_WQ+3,sT4),(side,item))
        k.vmem("buffer_load_dwordx4 v%d, s[%d:%d], s%d offen offset:1024 lds"%(VOFFW,SRD_WQ,SRD_WQ+3,sT5),(side,item))
    else:
        if side=='K':
            k.vmem("buffer_load_dwordx4 v%d, s[%d:%d], s%d offen lds"%(VOFFK0,SRD_K,SRD_K+3,sKOFF),(side,item))
            k.vmem("buffer_load_dwordx4 v%d, s[%d:%d], s%d offen offset:1024 lds"%(VOFFK1,SRD_K,SRD_K+3,sKOFF),(side,item))
            e("s_add_u32 s%d, s%d, 16384"%(sKOFF,sKOFF))
        else:
            k.vmem("buffer_load_dwordx4 v%d, s[%d:%d], s%d offen lds"%(VOFFV,SRD_V,SRD_V+3,sVOFF),(side,item))
            k.vmem("buffer_load_dwordx4 v%d, s[%d:%d], s%d offen offset:1024 lds"%(VOFFV,SRD_V,SRD_V+3,sVOFF),(side,item))
            e("s_add_u32 s%d, s%d, 16384"%(sVOFF,sVOFF))

if __name__=="__main__":
    from gen2 import gen_outproj
    hdr=open("cdna_kernels/%s.s.ref"%NAME).read().split("; Override launch")[0]
    out=hdr
    out+="; @launch kernel=attn_kernel grid=(512,1,1) block=(512,1,1) lds=131072\n"
    out+="; @launch kernel=outproj_kernel grid=(256,1,1) block=(256,1,1) lds=151552\n"
    out+='.amdgcn_target "amdgcn-amd-amdhsa--gfx950"\n.text\n'
    out+=".globl attn_kernel\n.p2align 8\n.type attn_kernel,@function\nattn_kernel:\n"
    out+=main()
    out+=".globl outproj_kernel\n.p2align 8\n.type outproj_kernel,@function\noutproj_kernel:\n"
    out+=gen_outproj()
    out+='.section .rodata,"a"\n'
    for nm,v,acc in (("attn_kernel",256,256),("outproj_kernel",400,256)):
        out+=""".p2align 6
.amdhsa_kernel %s
  .amdhsa_next_free_vgpr %d
  .amdhsa_next_free_sgpr 102
  .amdhsa_accum_offset %d
  .amdhsa_group_segment_fixed_size 0
  .amdhsa_kernarg_size 104
  .amdhsa_user_sgpr_count 2
  .amdhsa_user_sgpr_kernarg_segment_ptr 1
  .amdhsa_system_sgpr_workgroup_id_x 1
.end_amdhsa_kernel
"""%(nm,v,acc)
    open(sys.argv[1] if len(sys.argv)>1 else "cdna_kernels/%s.s"%NAME,"w").write(out)
```

```python
import sys, math
from asmlib import *

NAME="concat_heads__gqa_block_cached__gqa_block_cached__near_ridge"
C_SCALE = math.log2(math.e)/math.sqrt(128.0)
import struct
def f2u(x): return struct.unpack("<I",struct.pack("<f",x))[0]
T_RAW = 8.0/C_SCALE

LOOKAHEAD=5
import os
STAMPS=bool(os.environ.get("STAMPS"))
stamp_ctr=[0]
def stamp(k):
    if not STAMPS: return lambda: None
    k.e("s_memtime s[60:61]")
    idx=stamp_ctr[0]; stamp_ctr[0]+=1
    def post(): k.e("v_writelane_b32 v255, s60, %d"%idx)
    return post

class K:
    def __init__(s):
        s.l=[]; s.vm=[]
        s.lg=0
        s.lg_done=0
        s.rare=False
    def e(s,t):
        s.l.append(I(t,s.rare)); return s.l[-1]
    def vmem(s,t,tag):
        s.e(t); s.vm.append(tag)
    def wait_vm(s,tags,extra=""):
        last=-1
        for i,t in enumerate(s.vm):
            if t in tags: last=i
        n=len(s.vm)-1-last
        s.vm=s.vm[last+1:]
        assert n<=63
        return n
    def ds(s,t):
        s.e(t); s.lg+=1; return s.lg
    def wait_lg(s,idx):
        if idx<=s.lg_done: return
        n=s.lg-idx
        assert n<=15,n
        s.e("s_waitcnt lgkmcnt(%d)"%n); s.lg_done=idx

def vr(a,n=1): return "v%d"%a if n==1 else "v[%d:%d]"%(a,a+n-1)

OACC=0; QF=64; S0=96; S1=128; PR=160; POOL=176; KADDR=208; VADDR=216
MREF=220; MC=221; LSUM=222; LS=223; ALPHA=224; VMX=225; TMP=226; TMP2=227; TMP3=228; TMP4=229
XF=64; POOLQ=208; WADDR=240; VOFFW=244; VOFFK0=245; VOFFK1=246; VOFFV=247
T0=248;T1=249;T2=250;T3=251;T4=252;T5=253;T6=254;T7=255
SRD_X=8; SRD_WQ=12; SRD_K=16; SRD_V=20; SRD_O=24; SRD_WO=28; SRD_WP=32
sW=36; sW2K=37; sKOFF=38; sVOFF=39; sC=40; sT=41; sFLAG=42; sLOOP=43; sHQ=44; sQB=45; sB=46; sHKV=47; sBLK=48
sT0=50; sT1=51; sT2=52; sT3=53; sT4=54;sT5=55
PTR=64

def gen_attn():
    k=K(); e=k.e
    e("s_cmp_ge_u32 s2, 512"); e("s_cbranch_scc1 Lattn_done")
    e("s_load_dwordx16 s[%d:%d], s[0:1], 0"%(PTR,PTR+15))
    e("s_load_dwordx4 s[%d:%d], s[0:1], 64"%(PTR+16,PTR+19))
    e("s_load_dwordx2 s[%d:%d], s[0:1], 96"%(PTR+20,PTR+21))
    e("s_and_b32 s%d, s2, 7"%sT0)
    e("s_lshr_b32 s%d, s2, 3"%sT1)
    e("s_lshr_b32 s%d, s%d, 2"%(sBLK,sT0))
    e("s_and_b32 s%d, s%d, 3"%(sT2,sT0))
    e("s_lshl_b32 s%d, s%d, 2"%(sT2,sT2))
    e("s_and_b32 s%d, s%d, 3"%(sT3,sT1))
    e("s_add_u32 s%d, s%d, s%d"%(sB,sT2,sT3))
    e("s_lshr_b32 s%d, s%d, 2"%(sHKV,sT1))
    e("v_lshrrev_b32 v%d, 6, v0"%T0)
    e("v_and_b32 v%d, 63, v0"%T1)
    e("v_readfirstlane_b32 s%d, v%d"%(sW,T0))
    ps0=stamp(k)
    e("s_waitcnt lgkmcnt(0)")
    ps0()
    e("s_cmp_eq_u32 s%d, 0"%sBLK)
    for i in range(5):
        e("s_cselect_b32 s%d, s%d, s%d"%(90+2*i,PTR+2*i,PTR+10+2*i))
        e("s_cselect_b32 s%d, s%d, s%d"%(91+2*i,PTR+2*i+1,PTR+10+2*i+1))
    X,KP,VP,WQ,WO=90,92,94,96,98
    def srd(d,lo,hi,offs,size):
        if offs is None:
            e("s_mov_b32 s%d, s%d"%(d,lo)); e("s_and_b32 s%d, s%d, 0xffff"%(d+1,hi))
        else:
            e("s_add_u32 s%d, s%d, s%d"%(d,lo,offs)); e("s_addc_u32 s%d, s%d, 0"%(d+1,hi))
            e("s_and_b32 s%d, s%d, 0xffff"%(d+1,d+1))
        if isinstance(size,int): e("s_mov_b32 s%d, %d"%(d+2,size))
        else: e("s_mov_b32 s%d, s%d"%(d+2,size[0]))
        e("s_mov_b32 s%d, 0x20000"%(d+3))
    e("s_mul_i32 s%d, s%d, 147456"%(sT0,sB)); srd(SRD_X,X,X+1,sT0,147456)
    e("s_lshl_b32 s%d, s%d, 9"%(sT0,sHKV)); e("s_sub_u32 s%d, 4718592, s%d"%(sT1,sT0)); srd(SRD_WQ,WQ,WQ+1,sT0,(sT1,))
    e("s_lshl_b32 s%d, s%d, 4"%(sT0,sB)); e("s_add_u32 s%d, s%d, s%d"%(sT0,sT0,sHKV))
    e("s_lshl_b32 s%d, s%d, 18"%(sT1,sT0))
    srd(SRD_K,KP,KP+1,sT1,262144); srd(SRD_V,VP,VP+1,sT1,262144)
    e("s_lshl_b32 s%d, s%d, 24"%(sT1,sBLK)); srd(SRD_O,PTR+20,PTR+21,sT1,16777216)
    srd(SRD_WO,WO,WO+1,None,4718592)
    e("s_mul_i32 s%d, s%d, 4718592"%(sT1,sBLK)); e("s_add_u32 s%d, s%d, 33554432"%(sT1,sT1)); srd(SRD_WP,PTR+20,PTR+21,sT1,4718592)
    e("s_lshl_b32 s%d, s%d, 11"%(sW2K,sW))
    e("s_lshr_b32 s%d, s%d, 2"%(sHQ,sW))
    e("s_and_b32 s%d, s%d, 3"%(sQB,sW))
    e("s_mov_b32 s%d, 0x%08x"%(sC,f2u(C_SCALE))); e("s_mov_b32 s%d, 0x%08x"%(sT,f2u(T_RAW)))
    e("s_mov_b32 s%d, 0"%sFLAG)
    LANE=T1
    e("s_mov_b32 s59, s%d"%sT0)
    e("v_and_b32 v%d, 31, v%d"%(T4,LANE))
    e("v_lshrrev_b32 v%d, 5, v%d"%(T5,LANE))
    e("s_lshl_b32 s%d, s%d, 5"%(sT4,sQB))
    e("v_add_u32 v%d, s%d, v%d"%(T6,sT4,T4))
    e("v_mul_u32_u24 v%d, 1152, v%d"%(T6,T6))
    e("v_lshl_add_u32 v%d, v%d, 4, v%d"%(T6,T5,T6))
    e("v_mov_b32 v%d, v%d"%(T4,T6))
    def xload(S): k.vmem("buffer_load_dwordx4 %s, v%d, s[%d:%d], 0 offen offset:%d"%(vr(XF+4*S,4),T4,SRD_X,SRD_X+3,32*S),("x",S//4))
    for S in range(4): xload(S)
    e("v_lshrrev_b32 v%d, 4, v%d"%(T6,LANE))
    e("v_and_b32 v%d, 15, v%d"%(T7,LANE))
    e("s_lshl_b32 s%d, s%d, 3"%(sT4,sW))
    e("v_add_u32 v%d, s%d, v%d"%(T0,sT4,T6))
    e("v_and_b32 v%d, 15, v%d"%(T2,T0)); e("v_xor_b32 v%d, v%d, v%d"%(T2,T2,T7))
    e("v_lshlrev_b32 v%d, 4, v%d"%(T2,T2)); e("v_lshl_add_u32 v%d, v%d, 8, v%d"%(VOFFK0,T0,T2))
    e("v_xor_b32 v%d, 64, v%d"%(VOFFK1,VOFFK0))
    e("v_lshlrev_b32 v%d, 2, v%d"%(T2,T6)); e("v_xor_b32 v%d, v%d, v%d"%(T2,T2,T7)); e("v_lshlrev_b32 v%d, 4, v%d"%(T2,T2))
    e("v_lshl_add_u32 v%d, v%d, 8, v%d"%(VOFFV,T0,T2))
    e("v_lshl_add_u32 v%d, v%d, 13, v%d"%(VOFFW,T0,T2))
    e("v_bfe_u32 v%d, v%d, 2, 2"%(T0,LANE))
    e("v_bfe_u32 v%d, v%d, 4, 1"%(T2,LANE))
    e("v_and_b32 v%d, 1, v%d"%(T3,LANE))
    e("v_lshl_add_u32 v%d, v%d, 1, v%d"%(T2,T2,T3))
    e("v_lshlrev_b32 v%d, 2, v%d"%(T3,T0))
    e("v_xor_b32 v%d, v%d, v%d"%(T2,T2,T3))
    e("v_lshlrev_b32 v%d, 4, v%d"%(T2,T2))
    e("v_bfe_u32 v%d, v%d, 1, 1"%(T3,LANE))
    e("v_lshl_add_u32 v%d, v%d, 3, v%d"%(T2,T3,T2))
    e("v_lshl_add_u32 v%d, v%d, 3, v%d"%(T3,T5,T0))
    e("v_lshl_add_u32 v%d, v%d, 8, v%d"%(T2,T3,T2))
    e("s_lshl_b32 s%d, s%d, 16"%(sT4,sHQ))
    e("v_add_u32 v%d, s%d, v%d"%(WADDR,sT4,T2))
    for b in range(1,4): e("v_xor_b32 v%d, %d, v%d"%(WADDR+b,64*b,WADDR))
    def dma_item(side,item):
        st=item&3
        base=(0 if side=='K' else 65536)+st*16384
        e("s_add_u32 m0, s%d, %d"%(sW2K,base))
        if item<=8:
            so=item*64*8192+(0 if side=='K' else 256)
            e("s_mov_b32 s%d, %d"%(sT4,so)); e("s_mov_b32 s%d, %d"%(sT5,so+31744))
            k.vmem("buffer_load_dwordx4 v%d, s[%d:%d], s%d offen lds"%(VOFFW,SRD_WQ,SRD_WQ+3,sT4),(side,item))
            k.vmem("buffer_load_dwordx4 v%d, s[%d:%d], s%d offen offset:1024 lds"%(VOFFW,SRD_WQ,SRD_WQ+3,sT5),(side,item))
        else:
            if side=='K':
                k.vmem("buffer_load_dwordx4 v%d, s[%d:%d], s%d offen nt lds"%(VOFFK0,SRD_K,SRD_K+3,sKOFF),(side,item))
                k.vmem("buffer_load_dwordx4 v%d, s[%d:%d], s%d offen offset:1024 nt lds"%(VOFFK1,SRD_K,SRD_K+3,sKOFF),(side,item))
                e("s_add_u32 s%d, s%d, 16384"%(sKOFF,sKOFF)); e("s_and_b32 s%d, s%d, 0x3ffff"%(sKOFF,sKOFF))
            else:
                k.vmem("buffer_load_dwordx4 v%d, s[%d:%d], s%d offen nt lds"%(VOFFV,SRD_V,SRD_V+3,sVOFF),(side,item))
                k.vmem("buffer_load_dwordx4 v%d, s[%d:%d], s%d offen offset:1024 nt lds"%(VOFFV,SRD_V,SRD_V+3,sVOFF),(side,item))
                e("s_add_u32 s%d, s%d, 16384"%(sVOFF,sVOFF)); e("s_and_b32 s%d, s%d, 0x3ffff"%(sVOFF,sVOFF))
    e("s_lshr_b32 s%d, s2, 4"%sT4); e("s_add_u32 s%d, s%d, s2"%(sT4,sT4)); e("s_and_b32 s%d, s%d, 15"%(sT4,sT4))
    e("s_lshl_b32 s%d, s%d, 14"%(sKOFF,sT4)); e("s_mov_b32 s%d, s%d"%(sVOFF,sKOFF))
    dma_item('K',0); dma_item('V',0)
    for S in range(4,8): xload(S)
    dma_item('K',1); dma_item('V',1)
    for S in range(8,36): xload(S)
    dma_item('K',2)
    for i in range(64): e("v_mov_b32 v%d, 0"%(OACC+i))
    return k

def wo_pack_loads(k):
    e=k.e; LANE=T1
    e("s_mov_b32 s%d, s59"%sT0)
    e("v_lshrrev_b32 v%d, 5, v%d"%(T2,LANE))
    e("v_bfe_u32 v%d, v%d, 4, 1"%(T3,LANE))
    e("v_lshlrev_b32 v%d, 2, v%d"%(T2,T2))
    e("v_add_u32 v%d, v%d, v%d"%(T2,T2,T3))
    e("v_mul_u32_u24 v%d, 4608, v%d"%(T2,T2))
    e("v_and_b32 v%d, 15, v%d"%(T3,LANE))
    e("v_lshl_add_u32 v%d, v%d, 1, v%d"%(T2,T3,T2))
    e("v_add_u32 v%d, 9216, v%d"%(T3,T2))
    e("s_lshr_b32 s%d, s%d, 1"%(sT1,sT0))
    e("s_and_b32 s%d, s%d, 1"%(sT2,sT0)); e("s_mul_i32 s%d, s%d, 18"%(sT2,sT2))
    e("s_mul_i32 s%d, s%d, 36864"%(sT3,sT1))
    WPK=S0
    for f in range(3):
        e("s_add_u32 s%d, s%d, %d"%(sT4,sW,8*f)); e("s_min_u32 s%d, s%d, 17"%(sT4,sT4)); e("s_add_u32 s%d, s%d, s%d"%(sT4,sT4,sT2))
        e("s_lshl_b32 s%d, s%d, 5"%(sT5,sT4)); e("s_add_u32 s%d, s%d, s%d"%(sT5,sT5,sT3))
        for j in range(8):
            k.vmem("buffer_load_ushort v%d, v%d, s[%d:%d], s%d offen offset:%d"%(WPK+8*f+j, T3 if j>=4 else T2, SRD_WO,SRD_WO+3,sT5,(j&3)*1152),"wo")
        e("s_mul_i32 s%d, s%d, 36"%(56+f,sT1)); e("s_add_u32 s%d, s%d, s%d"%(56+f,56+f,sT4)); e("s_lshl_b32 s%d, s%d, 10"%(56+f,56+f))
def wo_pack_finish(k):
    e=k.e; LANE=T1; WPK=S0
    n=k.wait_vm(["wo"]); e("s_waitcnt vmcnt(%d)"%n)
    e("v_lshlrev_b32 v%d, 4, v%d"%(T0,LANE))
    for f in range(3):
        for j in range(4):
            e("v_lshl_or_b32 v%d, v%d, 16, v%d"%(WPK+8*f+j,WPK+8*f+2*j+1,WPK+8*f+2*j))
        k.vmem("buffer_store_dwordx4 %s, v%d, s[%d:%d], s%d offen"%(vr(WPK+8*f,4),T0,SRD_WP,SRD_WP+3,56+f),"wps")

class M:
    def __init__(s,text,reads,gate,pool):
        s.text=text; s.reads=reads; s.gate=gate; s.pool=pool; s.done=None

def emit_stream(k,ms,events,state):
    nr=state.get('nr',0)
    for i,m in enumerate(ms):
        for ev in events.get(i,[]):
            if callable(ev): ev()
            else: k.e(ev)
        while nr<len(ms) and nr<=i+LOOKAHEAD and ms[nr].gate<=state['period']:
            if ms[nr].done is None:
                d=0
                for r in ms[nr].reads: d=k.ds(r)
                ms[nr].done=d if ms[nr].reads else 0
            nr+=1
        assert m.done is not None,(i,m.text)
        if m.done: k.wait_lg(m.done)
        k.e(m.text)
    for ev in events.get(len(ms),[]):
        if callable(ev): ev()
        else: k.e(ev)
    state['nr']=nr

def spread(items,slots):
    out={}
    n=len(items); ns=len(slots)
    pos=0
    for si,sl in enumerate(slots):
        tgt=round(n*(si+1)/ns)
        out.setdefault(sl,[]).extend(items[pos:tgt]); pos=tgt
    return out

def main():
    k=gen_attn(); e=k.e
    LANE=T1
    pool_ctr=[0]
    def pslot(base):
        s=pool_ctr[0]%8; pool_ctr[0]+=1; return base+4*s
    state={'period':-1,'nr':0}
    def dma_item(side,item): return _dma(k,side,item)
    ms=[]; ev={}
    def top(p,need,dmas):
        def f():
            n=k.wait_vm(need)
            ps=stamp(k) if p in (0,1,9) else (lambda:None)
            e("s_waitcnt vmcnt(%d) lgkmcnt(0)"%n); k.lg_done=k.lg
            ps()
            e("s_barrier")
            state['period']=p
            for sd,it in dmas: dma_item(sd,it)
        return f
    for p in range(9):
        st=p&3
        for s in range(4):
            for b in range(4):
                fr=pslot(POOLQ)
                off=st*16384+s*4096
                reads=["ds_read_b64_tr_b16 %s, v%d offset:%d"%(vr(fr,2),WADDR+b,off),
                       "ds_read_b64_tr_b16 %s, v%d offset:%d"%(vr(fr+2,2),WADDR+b,off+1024)]
                ms.append(M("v_mfma_f32_32x32x16_bf16 %s, %s, %s, %s"%(vr(OACC+16*b,16),vr(fr,4),vr(XF+4*(4*p+s),4),vr(OACC+16*b,16)),reads,p,fr))
        idx=max(0,16*p-4)
        ev.setdefault(idx,[]).append(top(p,[('K',p),('V',p),('x',p)],[('V',p+2),('K',p+3)]))
    ev.setdefault(16*9-4,[]).append(top(9,[('K',9)],[('V',11),('K',12)]))
    emit_stream(k,ms,ev,state)
    for i in range(32):
        e("v_cvt_pk_bf16_f32 v%d, v%d, v%d"%(QF+i,OACC+2*i,OACC+2*i+1))
    import os
    if os.environ.get("DEBUGQ"):
        e("s_lshl_b32 s%d, s%d, 4"%(sT0,sB)); e("s_add_u32 s%d, s%d, s%d"%(sT0,sT0,sHKV)); e("s_lshl_b32 s%d, s%d, 3"%(sT0,sT0)); e("s_add_u32 s%d, s%d, s%d"%(sT0,sT0,sW)); e("s_lshl_b32 s%d, s%d, 13"%(sT0,sT0))
        e("v_lshlrev_b32 v%d, 4, v%d"%(T0,LANE))
        for T in range(8):
            e("buffer_store_dwordx4 %s, v%d, s[%d:%d], s%d offen"%(vr(QF+4*T,4),T0,SRD_O,SRD_O+3,sT0)); e("s_add_u32 s%d, s%d, 1024"%(sT0,sT0))
        e("s_waitcnt vmcnt(0)"); e("s_endpgm")
    for i in range(64): e("v_mov_b32 v%d, 0"%(OACC+i))
    e("v_and_b32 v%d, 31, v%d"%(T0,LANE)); e("v_lshrrev_b32 v%d, 5, v%d"%(T2,LANE))
    e("v_and_b32 v%d, 15, v%d"%(T3,LANE)); e("v_xor_b32 v%d, v%d, v%d"%(T3,T3,T2))
    e("v_lshlrev_b32 v%d, 4, v%d"%(T3,T3)); e("v_lshl_add_u32 v%d, v%d, 8, v%d"%(KADDR,T0,T3))
    for T in range(1,8): e("v_xor_b32 v%d, %d, v%d"%(KADDR+T,32*T,KADDR))
    e("v_bfe_u32 v%d, v%d, 2, 2"%(T0,LANE))
    e("v_bfe_u32 v%d, v%d, 4, 1"%(T3,LANE))
    e("v_bfe_u32 v%d, v%d, 1, 1"%(T4,LANE))
    e("v_lshl_add_u32 v%d, v%d, 1, v%d"%(T3,T3,T4))
    e("v_lshlrev_b32 v%d, 2, v%d"%(T4,T0)); e("v_xor_b32 v%d, v%d, v%d"%(T3,T3,T4)); e("v_lshlrev_b32 v%d, 4, v%d"%(T3,T3))
    e("v_and_b32 v%d, 1, v%d"%(T4,LANE)); e("v_lshl_add_u32 v%d, v%d, 3, v%d"%(T3,T4,T3))
    e("v_lshl_add_u32 v%d, v%d, 2, v%d"%(T4,T2,T0))
    e("v_lshl_add_u32 v%d, v%d, 8, v%d"%(T3,T4,T3))
    e("v_add_u32 v%d, 0x10000, v%d"%(VADDR,T3))
    for b in range(1,4): e("v_xor_b32 v%d, %d, v%d"%(VADDR+b,64*b,VADDR))
    e("v_mov_b32 v%d, 0xf149f2ca"%MREF); e("v_mov_b32 v%d, 0"%LSUM); e("v_mov_b32 v%d, 0"%MC)
    for i in range(16): e("v_mov_b32 v%d, 0"%(PR+i))
    for i in range(32): e("v_mov_b32 v%d, 0"%(POOL+i))

    lblc=[0]
    def Sreg(t): return S0 if (t&1)==0 else S1
    def qk_ms(t,p):
        st=(9+t)&3; out=[]
        for kb in range(2):
            for T in range(8):
                fr=pslot(POOL)
                out.append(M("v_mfma_f32_32x32x16_bf16 %s, %s, %s, %s"%(vr(Sreg(t)+16*kb,16),vr(fr,4),vr(QF+4*T,4),
                     "0" if T==0 else vr(Sreg(t)+16*kb,16)),
                     ["ds_read_b128 %s, v%d offset:%d"%(vr(fr,4),KADDR+T,st*16384+kb*8192)],p,fr))
        return out
    def pv_ms(t,p,ss):
        st=(9+t)&3; out=[]
        for s in ss:
            for b in range(4):
                fr=pslot(POOL); off=st*16384+s*4096
                out.append(M("v_mfma_f32_32x32x16_bf16 %s, %s, %s, %s"%(vr(OACC+16*b,16),vr(fr,4),vr(PR+4*s,4),vr(OACC+16*b,16)),
                    ["ds_read_b64_tr_b16 %s, v%d offset:%d"%(vr(fr,2),VADDR+b,off),
                     "ds_read_b64_tr_b16 %s, v%d offset:%d"%(vr(fr+2,2),VADDR+b,off+2048)],p,fr))
        return out
    def w1(t):
        S=Sreg(t); it=[]
        it.append("v_max3_f32 v%d, v%d, v%d, v%d"%(VMX,S,S+1,S+2))
        it.append("v_max3_f32 v%d, v%d, v%d, v%d"%(TMP,S+3,S+4,S+5))
        for i in range(6,32,4):
            it.append("v_max3_f32 v%d, v%d, v%d, v%d"%(VMX,VMX,S+i,S+i+1))
            if i+3<32: it.append("v_max3_f32 v%d, v%d, v%d, v%d"%(TMP,TMP,S+i+2,S+i+3))
        it.append("v_max_f32 v%d, v%d, v%d"%(VMX,VMX,TMP))
        it.append("v_mov_b32 v%d, v%d"%(TMP,VMX))
        it.append("v_permlane32_swap_b32 v%d, v%d"%(VMX,TMP))
        it.append("v_max_f32 v%d, v%d, v%d"%(VMX,VMX,TMP))
        it.append("v_sub_f32 v%d, v%d, v%d"%(TMP,VMX,MREF))
        def dec():
            lblc[0]+=1; L="Ldec%d"%lblc[0]
            e("v_cmp_lt_f32 vcc, s%d, v%d"%(sT,TMP))
            e("s_cbranch_vccz %s"%L)
            k.rare=True
            e("v_max_f32 v%d, v%d, v%d"%(TMP,MREF,VMX))
            e("v_sub_f32 v%d, v%d, v%d"%(TMP2,MREF,TMP))
            e("v_mul_f32 v%d, s%d, v%d"%(TMP2,sC,TMP2))
            e("v_exp_f32 v%d, v%d"%(ALPHA,TMP2))
            e("v_mov_b32 v%d, v%d"%(MREF,TMP))
            e("v_mul_f32 v%d, s%d, v%d"%(MC,sC,TMP))
            e("s_mov_b32 s%d, 1"%sFLAG)
            k.rare=False
            e(L+":")
        it.append(dec)
        return it
    def wexp(t,kb):
        S=Sreg(t)+16*kb; it=[]
        for i in range(16):
            it.append("v_fma_f32 v%d, v%d, s%d, -v%d"%(S+i,S+i,sC,MC))
        f=it; x=["v_exp_f32 v%d, v%d"%(S+i,S+i) for i in range(16)]
        a=[]
        for i in range(16):
            if kb==0 and i==0: a.append("v_mov_b32 v%d, v%d"%(LS,S))
            else: a.append("v_add_f32 v%d, v%d, v%d"%(LS,LS,S+i))
        seq=[]
        for i in range(16+4):
            if i<16: seq.append(f[i])
            if 0<=i-2<16: seq.append(x[i-2])
            if 0<=i-4<16: seq.append(a[i-4])
        return seq
    def wcvt(t,kb):
        S=Sreg(t)+16*kb
        return ["v_cvt_pk_bf16_f32 v%d, v%d, v%d"%(PR+8*kb+i,S+2*i,S+2*i+1) for i in range(8)]
    def rescale():
        lblc[0]+=1; L="Lrs%d"%lblc[0]
        e("s_cmp_eq_u32 s%d, 0"%sFLAG)
        e("s_cbranch_scc1 %s"%L)
        k.rare=True
        e("s_nop 15")
        for i in range(64): e("v_mul_f32 v%d, v%d, v%d"%(OACC+i,ALPHA,OACC+i))
        e("v_mul_f32 v%d, v%d, v%d"%(LSUM,ALPHA,LSUM))
        e("s_mov_b32 s%d, 0"%sFLAG)
        e("s_nop 1")
        k.rare=False
        e(L+":")
    pool_ctr[0]=0
    st2={'period':9,'nr':0}
    m0=qk_ms(0,9)
    emit_stream(k,m0,{},st2)
    fb0=w1(0)+wexp(0,0); nb0=len(fb0)*12//16
    for x in fb0[:nb0]:
        x() if callable(x) else e(x)
    def iteration(t,tt,final):
        p=10+tt
        ms=[]; ev={}
        carried=iteration.carry
        ms+=carried
        doqk = not (final and tt==3)
        if doqk: ms+=qk_ms(tt+1,p)
        b0=len(ms)
        pv=pv_ms(tt,p,[0,1,2,3])
        ms+=pv[:12]
        iteration.carry=pv[12:]
        ms_all=ms+iteration.carry
        dm=[]
        if not final: dm=[('V',p+2),('K',p+3)]
        elif tt==0: dm=[('V',p+2)]
        def topf():
            need=[('K',p),('V',p-1)]
            n=k.wait_vm(need)
            ps=stamp(k) if (final or tt==0) else (lambda:None)
            e("s_waitcnt vmcnt(%d) lgkmcnt(0)"%n); k.lg_done=k.lg
            ps()
            e("s_barrier")
            for sd,it in dm: dma_item(sd,it)
            if final and tt==3: wo_pack_loads(k)
        ev[0]=[topf]
        for i,l in spread(iteration.prev_late,[1,2,3,4]).items(): ev.setdefault(i,[]).extend(l)
        a_slots=list(range(5,b0)) if doqk else []
        fa=wexp(tt,1)[:0]
        lateA = wcvt(tt,0)+wexp(tt,1)+wcvt(tt,1)+["v_add_f32 v%d, v%d, v%d"%(LSUM,LSUM,LS)]
        if doqk:
            ev.setdefault(5,[]).append(rescale)
            for i,l in spread(lateA,list(range(5,b0))).items(): ev.setdefault(i,[]).extend(l)
        else:
            ev.setdefault(4,[]).append(rescale)
            ev.setdefault(4,[]).extend(lateA)
        if doqk:
            fb=w1(tt+1)+wexp(tt+1,0)
            nb=len(fb)*12//16
            for i,l in spread(fb[:nb],list(range(b0+1,len(ms)))+[len(ms)]).items(): ev.setdefault(i,[]).extend(l)
            iteration.late=fb[nb:]
        else:
            iteration.late=[]
        iteration.prev_late=iteration.late
        stt={'period':p,'nr':0}
        nr=0
        for i,m in enumerate(ms):
            for x in ev.get(i,[]): x() if callable(x) else e(x)
            while nr<len(ms_all) and nr<=i+LOOKAHEAD:
                mm=ms_all[nr]
                if mm.done is None:
                    d=0
                    for r in mm.reads: d=k.ds(r)
                    mm.done=d
                nr+=1
            if m.done: k.wait_lg(m.done)
            e(m.text)
        for x in ev.get(len(ms),[]): x() if callable(x) else e(x)
    dummy=[]
    for b in range(4):
        fr=pslot(POOL)
        mm=M("v_mfma_f32_32x32x16_bf16 %s, %s, %s, %s"%(vr(OACC+16*b,16),vr(fr,4),vr(PR+12,4),vr(OACC+16*b,16)),[],0,fr); mm.done=0
        dummy.append(mm)
    iteration.carry=dummy; iteration.prev_late=fb0[nb0:]
    for i in range(16): e("v_mov_b32 v%d, 0"%(POOL+i))
    e("s_mov_b32 s%d, 0"%sLOOP)
    pre_len=len(k.l)
    e("Lmain:")
    body_start=len(k.l)
    vm_entry=list(k.vm)
    prev_late_entry=iteration.prev_late
    for tt in range(4): iteration(None,tt,False)
    e("s_add_u32 s%d, s%d, 1"%(sLOOP,sLOOP)); e("s_cmp_lt_u32 s%d, 3"%sLOOP); e("s_cbranch_scc1 Lmain")
    body_end=len(k.l)
    rel=lambda l:[(a,b) if isinstance((a,b),tuple) else None for a,b in l]
    assert len(k.vm)==len(vm_entry),(k.vm,vm_entry)
    k.vm=list(vm_entry)
    for tt in range(4): iteration(None,tt,True)
    for m in iteration.carry:
        if m.done: k.wait_lg(m.done)
        e(m.text)
    e("v_mov_b32 v%d, v%d"%(TMP,LSUM))
    e("v_permlane32_swap_b32 v%d, v%d"%(LSUM,TMP))
    e("v_add_f32 v%d, v%d, v%d"%(LSUM,LSUM,TMP))
    e("v_rcp_f32 v%d, v%d"%(LSUM,LSUM))
    e("v_bfe_u32 v%d, v%d, 4, 1"%(T0,LANE)); e("v_lshrrev_b32 v%d, 5, v%d"%(T2,LANE)); e("v_and_b32 v%d, 15, v%d"%(T3,LANE))
    e("v_lshlrev_b32 v%d, 4, v%d"%(T3,T3)); e("v_lshl_add_u32 v%d, v%d, 8, v%d"%(T3,T2,T3)); e("v_lshl_add_u32 v%d, v%d, 10, v%d"%(T3,T0,T3))
    e("s_lshl_b32 s%d, s%d, 1"%(sT0,sB)); e("s_lshr_b32 s%d, s%d, 1"%(sT1,sQB)); e("s_add_u32 s%d, s%d, s%d"%(sT0,sT0,sT1)); e("s_lshl_b32 s%d, s%d, 19"%(sT0,sT0))
    e("s_lshl_b32 s%d, s%d, 1"%(sT1,sHKV)); e("s_add_u32 s%d, s%d, s%d"%(sT1,sT1,sHQ)); e("s_lshl_b32 s%d, s%d, 14"%(sT1,sT1)); e("s_add_u32 s%d, s%d, s%d"%(sT0,sT0,sT1))
    e("s_and_b32 s%d, s%d, 1"%(sT1,sQB)); e("s_lshl_b32 s%d, s%d, 11"%(sT1,sT1)); e("s_add_u32 s%d, s%d, s%d"%(sT0,sT0,sT1))
    for b in range(4):
        for i in range(16): e("v_mul_f32 v%d, v%d, v%d"%(OACC+16*b+i,LSUM,OACC+16*b+i))
        for i in range(8): e("v_cvt_pk_bf16_f32 v%d, v%d, v%d"%(S1+8*b+i,OACC+16*b+2*i,OACC+16*b+2*i+1))
        for t in range(2):
            k.vmem("buffer_store_dwordx4 %s, v%d, s[%d:%d], s%d offen offset:%d"%(vr(S1+8*b+4*t,4),T3,SRD_O,SRD_O+3,sT0,512*t),"o")
        if b<3: e("s_add_u32 s%d, s%d, 4096"%(sT0,sT0))
    wo_pack_finish(k)
    if STAMPS:
        ps=stamp(k); e("s_waitcnt vmcnt(0) lgkmcnt(0)"); ps()
        e("s_add_u32 s%d, s%d, 0x4000000"%(SRD_WP,PTR+20)); e("s_addc_u32 s%d, s%d, 0"%(SRD_WP+1,PTR+21)); e("s_and_b32 s%d, s%d, 0xffff"%(SRD_WP+1,SRD_WP+1))
        e("s_mov_b32 s%d, 0x1000000"%(SRD_WP+2))
        e("s_lshl_b32 s%d, s2, 3"%sT0); e("s_add_u32 s%d, s%d, s%d"%(sT0,sT0,sW)); e("s_lshl_b32 s%d, s%d, 8"%(sT0,sT0))
        e("v_lshlrev_b32 v%d, 2, v%d"%(T0,LANE))
        e("buffer_store_dword v255, v%d, s[%d:%d], s%d offen"%(T0,SRD_WP,SRD_WP+3,sT0))
    e("Lattn_done:"); e("s_endpgm")
    L=k.l
    fix_hazards(L)
    body=L[body_start:body_end]
    for _ in range(2):
        fix_hazards(body, ctx=L[body_end-40:body_end])
    fix_hazards(L)
    return render(L)

def _dma(k,side,item):
    e=k.e
    st=item&3
    base=(0 if side=='K' else 65536)+st*16384
    e("s_add_u32 m0, s%d, %d"%(sW2K,base))
    if item<=8:
        so=item*64*8192+(0 if side=='K' else 256)
        e("s_mov_b32 s%d, %d"%(sT4,so)); e("s_mov_b32 s%d, %d"%(sT5,so+31744))
        k.vmem("buffer_load_dwordx4 v%d, s[%d:%d], s%d offen lds"%(VOFFW,SRD_WQ,SRD_WQ+3,sT4),(side,item))
        k.vmem("buffer_load_dwordx4 v%d, s[%d:%d], s%d offen offset:1024 lds"%(VOFFW,SRD_WQ,SRD_WQ+3,sT5),(side,item))
    else:
        if side=='K':
            k.vmem("buffer_load_dwordx4 v%d, s[%d:%d], s%d offen nt lds"%(VOFFK0,SRD_K,SRD_K+3,sKOFF),(side,item))
            k.vmem("buffer_load_dwordx4 v%d, s[%d:%d], s%d offen offset:1024 nt lds"%(VOFFK1,SRD_K,SRD_K+3,sKOFF),(side,item))
            e("s_add_u32 s%d, s%d, 16384"%(sKOFF,sKOFF)); e("s_and_b32 s%d, s%d, 0x3ffff"%(sKOFF,sKOFF))
        else:
            k.vmem("buffer_load_dwordx4 v%d, s[%d:%d], s%d offen nt lds"%(VOFFV,SRD_V,SRD_V+3,sVOFF),(side,item))
            k.vmem("buffer_load_dwordx4 v%d, s[%d:%d], s%d offen offset:1024 nt lds"%(VOFFV,SRD_V,SRD_V+3,sVOFF),(side,item))
            e("s_add_u32 s%d, s%d, 16384"%(sVOFF,sVOFF)); e("s_and_b32 s%d, s%d, 0x3ffff"%(sVOFF,sVOFF))

if __name__=="__main__":
    from gen2 import gen_outproj
    hdr=open("cdna_kernels/%s.s.ref"%NAME).read().split("; Override launch")[0]
    out=hdr
    out+="; @launch kernel=attn_kernel grid=(512,1,1) block=(512,1,1) lds=131072\n"
    out+="; @launch kernel=outproj_kernel grid=(256,1,1) block=(256,1,1) lds=151552\n"
    out+='.amdgcn_target "amdgcn-amd-amdhsa--gfx950"\n.text\n'
    out+=".globl attn_kernel\n.p2align 8\n.type attn_kernel,@function\nattn_kernel:\n"
    out+=main()
    out+=".globl outproj_kernel\n.p2align 8\n.type outproj_kernel,@function\noutproj_kernel:\n"
    out+=gen_outproj()
    out+='.section .rodata,"a"\n'
    for nm,v,acc in (("attn_kernel",256,256),("outproj_kernel",400,256)):
        out+=""".p2align 6
.amdhsa_kernel %s
  .amdhsa_next_free_vgpr %d
  .amdhsa_next_free_sgpr 102
  .amdhsa_accum_offset %d
  .amdhsa_group_segment_fixed_size 0
  .amdhsa_kernarg_size 104
  .amdhsa_user_sgpr_count 2
  .amdhsa_user_sgpr_kernarg_segment_ptr 1
  .amdhsa_system_sgpr_workgroup_id_x 1
.end_amdhsa_kernel
"""%(nm,v,acc)
    open(sys.argv[1] if len(sys.argv)>1 else "cdna_kernels/%s.s"%NAME,"w").write(out)
```

```python
import sys, math
from asmlib import *

NAME="concat_heads__gqa_block_cached__gqa_block_cached__near_ridge"
C_SCALE = math.log2(math.e)/math.sqrt(128.0)
import struct
def f2u(x): return struct.unpack("<I",struct.pack("<f",x))[0]
T_RAW = 8.0/C_SCALE

LOOKAHEAD=5
import os
STAMPS=bool(os.environ.get("STAMPS"))
stamp_ctr=[0]
def stamp(k):
    if not STAMPS: return lambda: None
    k.e("s_memtime s[60:61]")
    idx=stamp_ctr[0]; stamp_ctr[0]+=1
    def post(): k.e("v_writelane_b32 v255, s60, %d"%idx)
    return post

class K:
    def __init__(s):
        s.l=[]; s.vm=[]
        s.lg=0
        s.lg_done=0
        s.rare=False
    def e(s,t):
        s.l.append(I(t,s.rare)); return s.l[-1]
    def vmem(s,t,tag):
        s.e(t); s.vm.append(tag)
    def wait_vm(s,tags,extra=""):
        last=-1
        for i,t in enumerate(s.vm):
            if t in tags: last=i
        n=len(s.vm)-1-last
        s.vm=s.vm[last+1:]
        assert n<=63
        return n
    def ds(s,t):
        s.e(t); s.lg+=1; return s.lg
    def wait_lg(s,idx):
        if idx<=s.lg_done: return
        n=s.lg-idx
        assert n<=15,n
        s.e("s_waitcnt lgkmcnt(%d)"%n); s.lg_done=idx

def vr(a,n=1): return "v%d"%a if n==1 else "v[%d:%d]"%(a,a+n-1)

OACC=0; QF=64; S0=96; S1=128; PR=160; POOL=176; KADDR=208; VADDR=216
MREF=220; MC=221; LSUM=222; LS=223; ALPHA=224; VMX=225; TMP=226; TMP2=227; TMP3=228; TMP4=229
XF=64; XPOOL=64; XADDR=96; XD0=100; XD1=101; XWARM=102; XWD=104; POOLQ=208; WADDR=240; VOFFW=244; VOFFK0=245; VOFFK1=246; VOFFV=247
T0=248;T1=249;T2=250;T3=251;T4=252;T5=253;T6=254;T7=255
SRD_X=8; SRD_WQ=12; SRD_K=16; SRD_V=20; SRD_O=24; SRD_WO=28; SRD_WP=32
sW=36; sW2K=37; sKOFF=38; sVOFF=39; sC=40; sT=41; sFLAG=42; sLOOP=43; sHQ=44; sQB=45; sB=46; sHKV=47; sBLK=48
sT0=50; sT1=51; sT2=52; sT3=53; sT4=54;sT5=55
PTR=64

def gen_attn():
    k=K(); e=k.e
    e("s_cmp_ge_u32 s2, 512"); e("s_cbranch_scc1 Lattn_done")
    e("s_load_dwordx16 s[%d:%d], s[0:1], 0"%(PTR,PTR+15))
    e("s_load_dwordx4 s[%d:%d], s[0:1], 64"%(PTR+16,PTR+19))
    e("s_load_dwordx2 s[%d:%d], s[0:1], 96"%(PTR+20,PTR+21))
    e("s_and_b32 s%d, s2, 7"%sT0)
    e("s_lshr_b32 s%d, s2, 3"%sT1)
    e("s_lshr_b32 s%d, s%d, 2"%(sBLK,sT0))
    e("s_and_b32 s%d, s%d, 3"%(sT2,sT0))
    e("s_lshl_b32 s%d, s%d, 2"%(sT2,sT2))
    e("s_and_b32 s%d, s%d, 3"%(sT3,sT1))
    e("s_add_u32 s%d, s%d, s%d"%(sB,sT2,sT3))
    e("s_lshr_b32 s%d, s%d, 2"%(sHKV,sT1))
    e("v_lshrrev_b32 v%d, 6, v0"%T0)
    e("v_and_b32 v%d, 63, v0"%T1)
    e("v_readfirstlane_b32 s%d, v%d"%(sW,T0))
    if STAMPS:
        e("s_memtime s[62:63]"); stamp_ctr[0]+=1
    e("s_waitcnt lgkmcnt(0)")
    e("s_cmp_eq_u32 s%d, 0"%sBLK)
    for i in range(5):
        e("s_cselect_b32 s%d, s%d, s%d"%(90+2*i,PTR+2*i,PTR+10+2*i))
        e("s_cselect_b32 s%d, s%d, s%d"%(91+2*i,PTR+2*i+1,PTR+10+2*i+1))
    X,KP,VP,WQ,WO=90,92,94,96,98
    def srd(d,lo,hi,offs,size):
        if offs is None:
            e("s_mov_b32 s%d, s%d"%(d,lo)); e("s_and_b32 s%d, s%d, 0xffff"%(d+1,hi))
        else:
            e("s_add_u32 s%d, s%d, s%d"%(d,lo,offs)); e("s_addc_u32 s%d, s%d, 0"%(d+1,hi))
            e("s_and_b32 s%d, s%d, 0xffff"%(d+1,d+1))
        if isinstance(size,int): e("s_mov_b32 s%d, %d"%(d+2,size))
        else: e("s_mov_b32 s%d, s%d"%(d+2,size[0]))
        e("s_mov_b32 s%d, 0x20000"%(d+3))
    e("s_mul_i32 s%d, s%d, 147456"%(sT0,sB)); srd(SRD_X,X,X+1,sT0,147456)
    e("s_lshl_b32 s%d, s%d, 9"%(sT0,sHKV)); e("s_sub_u32 s%d, 4718592, s%d"%(sT1,sT0)); srd(SRD_WQ,WQ,WQ+1,sT0,(sT1,))
    e("s_lshl_b32 s%d, s%d, 4"%(sT0,sB)); e("s_add_u32 s%d, s%d, s%d"%(sT0,sT0,sHKV))
    e("s_lshl_b32 s%d, s%d, 18"%(sT1,sT0))
    srd(SRD_K,KP,KP+1,sT1,262144); srd(SRD_V,VP,VP+1,sT1,262144)
    e("s_lshl_b32 s%d, s%d, 24"%(sT1,sBLK)); srd(SRD_O,PTR+20,PTR+21,sT1,16777216)
    srd(SRD_WO,WO,WO+1,None,4718592)
    e("s_mul_i32 s%d, s%d, 4718592"%(sT1,sBLK)); e("s_add_u32 s%d, s%d, 33554432"%(sT1,sT1)); srd(SRD_WP,PTR+20,PTR+21,sT1,4718592)
    e("s_lshl_b32 s%d, s%d, 11"%(sW2K,sW))
    e("s_lshr_b32 s%d, s%d, 2"%(sHQ,sW))
    e("s_and_b32 s%d, s%d, 3"%(sQB,sW))
    e("s_mov_b32 s%d, 0x%08x"%(sC,f2u(C_SCALE))); e("s_mov_b32 s%d, 0x%08x"%(sT,f2u(T_RAW)))
    e("s_mov_b32 s%d, 0"%sFLAG)
    LANE=T1
    e("s_mov_b32 s59, s%d"%sT0)
    e("v_and_b32 v%d, 31, v%d"%(T4,LANE))
    e("v_lshrrev_b32 v%d, 5, v%d"%(T5,LANE))
    e("v_lshrrev_b32 v%d, 3, v%d"%(T6,LANE))
    e("s_lshl_b32 s%d, s%d, 4"%(sT4,sW))
    e("v_add_u32 v%d, s%d, v%d"%(T7,sT4,T6))
    e("v_mul_u32_u24 v%d, 1152, v%d"%(T7,T7))
    e("v_lshrrev_b32 v%d, 1, v%d"%(T6,T6))
    e("v_and_b32 v%d, 7, v%d"%(T0,LANE)); e("v_xor_b32 v%d, v%d, v%d"%(T0,T0,T6))
    e("v_lshl_add_u32 v%d, v%d, 4, v%d"%(XD0,T0,T7))
    e("v_xor_b32 v%d, 64, v%d"%(XD1,XD0))
    e("v_bfe_u32 v%d, v%d, 1, 3"%(T0,LANE)); e("v_xor_b32 v%d, v%d, v%d"%(T0,T0,T5)); e("v_lshlrev_b32 v%d, 4, v%d"%(T0,T0))
    e("v_lshl_add_u32 v%d, v%d, 7, v%d"%(T0,T4,T0))
    e("s_lshl_b32 s%d, s%d, 12"%(sT4,sQB)); e("s_add_u32 s%d, s%d, 131072"%(sT4,sT4))
    e("v_add_u32 v%d, s%d, v%d"%(XADDR,sT4,T0))
    for q in range(1,4): e("v_xor_b32 v%d, %d, v%d"%(XADDR+q,32*q,XADDR))
    e("s_mul_i32 s%d, s%d, 192"%(sT4,sW)); e("v_add_u32 v%d, s%d, v%d"%(XWARM,sT4,LANE)); e("v_lshlrev_b32 v%d, 7, v%d"%(XWARM,XWARM))
    e("v_lshrrev_b32 v%d, 4, v%d"%(T6,LANE))
    e("v_and_b32 v%d, 15, v%d"%(T7,LANE))
    e("s_lshl_b32 s%d, s%d, 3"%(sT4,sW))
    e("v_add_u32 v%d, s%d, v%d"%(T0,sT4,T6))
    e("v_and_b32 v%d, 15, v%d"%(T2,T0)); e("v_xor_b32 v%d, v%d, v%d"%(T2,T2,T7))
    e("v_lshlrev_b32 v%d, 4, v%d"%(T2,T2)); e("v_lshl_add_u32 v%d, v%d, 8, v%d"%(VOFFK0,T0,T2))
    e("v_xor_b32 v%d, 64, v%d"%(VOFFK1,VOFFK0))
    e("v_lshlrev_b32 v%d, 2, v%d"%(T2,T6)); e("v_xor_b32 v%d, v%d, v%d"%(T2,T2,T7)); e("v_lshlrev_b32 v%d, 4, v%d"%(T2,T2))
    e("v_lshl_add_u32 v%d, v%d, 8, v%d"%(VOFFV,T0,T2))
    e("v_lshl_add_u32 v%d, v%d, 13, v%d"%(VOFFW,T0,T2))
    e("v_bfe_u32 v%d, v%d, 2, 2"%(T0,LANE))
    e("v_bfe_u32 v%d, v%d, 4, 1"%(T2,LANE))
    e("v_and_b32 v%d, 1, v%d"%(T3,LANE))
    e("v_lshl_add_u32 v%d, v%d, 1, v%d"%(T2,T2,T3))
    e("v_lshlrev_b32 v%d, 2, v%d"%(T3,T0))
    e("v_xor_b32 v%d, v%d, v%d"%(T2,T2,T3))
    e("v_lshlrev_b32 v%d, 4, v%d"%(T2,T2))
    e("v_bfe_u32 v%d, v%d, 1, 1"%(T3,LANE))
    e("v_lshl_add_u32 v%d, v%d, 3, v%d"%(T2,T3,T2))
    e("v_lshl_add_u32 v%d, v%d, 3, v%d"%(T3,T5,T0))
    e("v_lshl_add_u32 v%d, v%d, 8, v%d"%(T2,T3,T2))
    e("s_lshl_b32 s%d, s%d, 16"%(sT4,sHQ))
    e("v_add_u32 v%d, s%d, v%d"%(WADDR,sT4,T2))
    for b in range(1,4): e("v_xor_b32 v%d, %d, v%d"%(WADDR+b,64*b,WADDR))
    def dma_item(side,item):
        st=item&3
        base=(0 if side=='K' else 65536)+st*16384
        e("s_add_u32 m0, s%d, %d"%(sW2K,base))
        if item<=8:
            so=item*64*8192+(0 if side=='K' else 256)
            e("s_mov_b32 s%d, %d"%(sT4,so)); e("s_mov_b32 s%d, %d"%(sT5,so+31744))
            k.vmem("buffer_load_dwordx4 v%d, s[%d:%d], s%d offen lds"%(VOFFW,SRD_WQ,SRD_WQ+3,sT4),(side,item))
            k.vmem("buffer_load_dwordx4 v%d, s[%d:%d], s%d offen offset:1024 lds"%(VOFFW,SRD_WQ,SRD_WQ+3,sT5),(side,item))
        else:
            if side=='K':
                k.vmem("buffer_load_dwordx4 v%d, s[%d:%d], s%d offen nt lds"%(VOFFK0,SRD_K,SRD_K+3,sKOFF),(side,item))
                k.vmem("buffer_load_dwordx4 v%d, s[%d:%d], s%d offen offset:1024 nt lds"%(VOFFK1,SRD_K,SRD_K+3,sKOFF),(side,item))
                e("s_add_u32 s%d, s%d, 16384"%(sKOFF,sKOFF)); e("s_and_b32 s%d, s%d, 0x3ffff"%(sKOFF,sKOFF))
            else:
                k.vmem("buffer_load_dwordx4 v%d, s[%d:%d], s%d offen nt lds"%(VOFFV,SRD_V,SRD_V+3,sVOFF),(side,item))
                k.vmem("buffer_load_dwordx4 v%d, s[%d:%d], s%d offen offset:1024 nt lds"%(VOFFV,SRD_V,SRD_V+3,sVOFF),(side,item))
                e("s_add_u32 s%d, s%d, 16384"%(sVOFF,sVOFF)); e("s_and_b32 s%d, s%d, 0x3ffff"%(sVOFF,sVOFF))
    e("s_lshr_b32 s%d, s2, 4"%sT4); e("s_add_u32 s%d, s%d, s2"%(sT4,sT4)); e("s_and_b32 s%d, s%d, 15"%(sT4,sT4))
    e("s_lshl_b32 s%d, s%d, 14"%(sKOFF,sT4)); e("s_mov_b32 s%d, s%d"%(sVOFF,sKOFF))
    _dma(k,'X',0); dma_item('K',0); dma_item('V',0)
    for i in range(3):
        e("s_mov_b32 s%d, %d"%(sT4,8192*i))
        k.vmem("buffer_load_dword v%d, v%d, s[%d:%d], s%d offen"%(XWD+i,XWARM,SRD_X,SRD_X+3,sT4),"warm")
    _dma(k,'X',1); dma_item('K',1); dma_item('V',1); dma_item('K',2)
    for i in range(64): e("v_mov_b32 v%d, 0"%(OACC+i))
    return k

def wo_pack_loads(k):
    e=k.e; LANE=T1
    e("s_mov_b32 s%d, s59"%sT0)
    e("v_lshrrev_b32 v%d, 5, v%d"%(T2,LANE))
    e("v_bfe_u32 v%d, v%d, 4, 1"%(T3,LANE))
    e("v_lshlrev_b32 v%d, 2, v%d"%(T2,T2))
    e("v_add_u32 v%d, v%d, v%d"%(T2,T2,T3))
    e("v_mul_u32_u24 v%d, 4608, v%d"%(T2,T2))
    e("v_and_b32 v%d, 15, v%d"%(T3,LANE))
    e("v_lshl_add_u32 v%d, v%d, 1, v%d"%(T2,T3,T2))
    e("v_add_u32 v%d, 9216, v%d"%(T3,T2))
    e("s_lshr_b32 s%d, s%d, 1"%(sT1,sT0))
    e("s_and_b32 s%d, s%d, 1"%(sT2,sT0)); e("s_mul_i32 s%d, s%d, 18"%(sT2,sT2))
    e("s_mul_i32 s%d, s%d, 36864"%(sT3,sT1))
    WPK=S0
    for f in range(3):
        e("s_add_u32 s%d, s%d, %d"%(sT4,sW,8*f)); e("s_min_u32 s%d, s%d, 17"%(sT4,sT4)); e("s_add_u32 s%d, s%d, s%d"%(sT4,sT4,sT2))
        e("s_lshl_b32 s%d, s%d, 5"%(sT5,sT4)); e("s_add_u32 s%d, s%d, s%d"%(sT5,sT5,sT3))
        for j in range(8):
            k.vmem("buffer_load_ushort v%d, v%d, s[%d:%d], s%d offen offset:%d"%(WPK+8*f+j, T3 if j>=4 else T2, SRD_WO,SRD_WO+3,sT5,(j&3)*1152),"wo")
        e("s_mul_i32 s%d, s%d, 36"%(56+f,sT1)); e("s_add_u32 s%d, s%d, s%d"%(56+f,56+f,sT4)); e("s_lshl_b32 s%d, s%d, 10"%(56+f,56+f))
def wo_pack_finish(k):
    e=k.e; LANE=T1; WPK=S0
    n=k.wait_vm(["wo"]); e("s_waitcnt vmcnt(%d)"%n)
    e("v_lshlrev_b32 v%d, 4, v%d"%(T0,LANE))
    for f in range(3):
        for j in range(4):
            e("v_lshl_or_b32 v%d, v%d, 16, v%d"%(WPK+8*f+j,WPK+8*f+2*j+1,WPK+8*f+2*j))
        k.vmem("buffer_store_dwordx4 %s, v%d, s[%d:%d], s%d offen"%(vr(WPK+8*f,4),T0,SRD_WP,SRD_WP+3,56+f),"wps")

class M:
    def __init__(s,text,reads,gate,pool):
        s.text=text; s.reads=reads; s.gate=gate; s.pool=pool; s.done=None

def emit_stream(k,ms,events,state):
    nr=state.get('nr',0)
    for i,m in enumerate(ms):
        for ev in events.get(i,[]):
            if callable(ev): ev()
            else: k.e(ev)
        while nr<len(ms) and nr<=i+LOOKAHEAD and ms[nr].gate<=state['period']:
            if ms[nr].done is None:
                d=0
                for r in ms[nr].reads: d=k.ds(r)
                ms[nr].done=d if ms[nr].reads else 0
            nr+=1
        assert m.done is not None,(i,m.text)
        if m.done: k.wait_lg(m.done)
        k.e(m.text)
    for ev in events.get(len(ms),[]):
        if callable(ev): ev()
        else: k.e(ev)
    state['nr']=nr

def spread(items,slots):
    out={}
    n=len(items); ns=len(slots)
    pos=0
    for si,sl in enumerate(slots):
        tgt=round(n*(si+1)/ns)
        out.setdefault(sl,[]).extend(items[pos:tgt]); pos=tgt
    return out

def main():
    k=gen_attn(); e=k.e
    LANE=T1
    pool_ctr=[0]
    def pslot(base):
        s=pool_ctr[0]%8; pool_ctr[0]+=1; return base+4*s
    state={'period':-1,'nr':0}
    def dma_item(side,item): return _dma(k,side,item)
    ms=[]; ev={}
    def top(p,need,dmas):
        def f():
            n=k.wait_vm(need)
            if STAMPS and p==0: e("v_writelane_b32 v255, s62, 0")
            ps=stamp(k) if p in (0,1,9) else (lambda:None)
            e("s_waitcnt vmcnt(%d) lgkmcnt(0)"%n); k.lg_done=k.lg
            ps()
            e("s_barrier")
            state['period']=p
            for sd,it in dmas: dma_item(sd,it)
        return f
    for p in range(9):
        st=p&3
        for s in range(4):
            for b in range(4):
                fr=pslot(POOLQ)
                off=st*16384+s*4096
                reads=["ds_read_b64_tr_b16 %s, v%d offset:%d"%(vr(fr,2),WADDR+b,off),
                       "ds_read_b64_tr_b16 %s, v%d offset:%d"%(vr(fr+2,2),WADDR+b,off+1024)]
                xr=XPOOL+((p&1)*4+s)*4
                if b==0: reads=["ds_read_b128 %s, v%d offset:%d"%(vr(xr,4),XADDR+s,(p&1)*16384)]+reads
                ms.append(M("v_mfma_f32_32x32x16_bf16 %s, %s, %s, %s"%(vr(OACC+16*b,16),vr(fr,4),vr(xr,4),vr(OACC+16*b,16)),reads,p,fr))
        idx=max(0,16*p-4)
        ev.setdefault(idx,[]).append(top(p,[('K',p),('V',p),('X',p)],([('X',p+1)] if 1<=p<=7 else [])+[('V',p+2),('K',p+3)]))
    ev.setdefault(16*9-4,[]).append(top(9,[('K',9)],[('V',11),('K',12)]))
    emit_stream(k,ms,ev,state)
    for i in range(32):
        e("v_cvt_pk_bf16_f32 v%d, v%d, v%d"%(QF+i,OACC+2*i,OACC+2*i+1))
    import os
    if os.environ.get("DEBUGQ"):
        e("s_lshl_b32 s%d, s%d, 4"%(sT0,sB)); e("s_add_u32 s%d, s%d, s%d"%(sT0,sT0,sHKV)); e("s_lshl_b32 s%d, s%d, 3"%(sT0,sT0)); e("s_add_u32 s%d, s%d, s%d"%(sT0,sT0,sW)); e("s_lshl_b32 s%d, s%d, 13"%(sT0,sT0))
        e("v_lshlrev_b32 v%d, 4, v%d"%(T0,LANE))
        for T in range(8):
            e("buffer_store_dwordx4 %s, v%d, s[%d:%d], s%d offen"%(vr(QF+4*T,4),T0,SRD_O,SRD_O+3,sT0)); e("s_add_u32 s%d, s%d, 1024"%(sT0,sT0))
        e("s_waitcnt vmcnt(0)"); e("s_endpgm")
    for i in range(64): e("v_mov_b32 v%d, 0"%(OACC+i))
    e("v_and_b32 v%d, 31, v%d"%(T0,LANE)); e("v_lshrrev_b32 v%d, 5, v%d"%(T2,LANE))
    e("v_and_b32 v%d, 15, v%d"%(T3,LANE)); e("v_xor_b32 v%d, v%d, v%d"%(T3,T3,T2))
    e("v_lshlrev_b32 v%d, 4, v%d"%(T3,T3)); e("v_lshl_add_u32 v%d, v%d, 8, v%d"%(KADDR,T0,T3))
    for T in range(1,8): e("v_xor_b32 v%d, %d, v%d"%(KADDR+T,32*T,KADDR))
    e("v_bfe_u32 v%d, v%d, 2, 2"%(T0,LANE))
    e("v_bfe_u32 v%d, v%d, 4, 1"%(T3,LANE))
    e("v_bfe_u32 v%d, v%d, 1, 1"%(T4,LANE))
    e("v_lshl_add_u32 v%d, v%d, 1, v%d"%(T3,T3,T4))
    e("v_lshlrev_b32 v%d, 2, v%d"%(T4,T0)); e("v_xor_b32 v%d, v%d, v%d"%(T3,T3,T4)); e("v_lshlrev_b32 v%d, 4, v%d"%(T3,T3))
    e("v_and_b32 v%d, 1, v%d"%(T4,LANE)); e("v_lshl_add_u32 v%d, v%d, 3, v%d"%(T3,T4,T3))
    e("v_lshl_add_u32 v%d, v%d, 2, v%d"%(T4,T2,T0))
    e("v_lshl_add_u32 v%d, v%d, 8, v%d"%(T3,T4,T3))
    e("v_add_u32 v%d, 0x10000, v%d"%(VADDR,T3))
    for b in range(1,4): e("v_xor_b32 v%d, %d, v%d"%(VADDR+b,64*b,VADDR))
    e("v_mov_b32 v%d, 0xf149f2ca"%MREF); e("v_mov_b32 v%d, 0"%LSUM); e("v_mov_b32 v%d, 0"%MC)
    for i in range(16): e("v_mov_b32 v%d, 0"%(PR+i))
    for i in range(32): e("v_mov_b32 v%d, 0"%(POOL+i))

    lblc=[0]
    def Sreg(t): return S0 if (t&1)==0 else S1
    def qk_ms(t,p):
        st=(9+t)&3; out=[]
        for kb in range(2):
            for T in range(8):
                fr=pslot(POOL)
                out.append(M("v_mfma_f32_32x32x16_bf16 %s, %s, %s, %s"%(vr(Sreg(t)+16*kb,16),vr(fr,4),vr(QF+4*T,4),
                     "0" if T==0 else vr(Sreg(t)+16*kb,16)),
                     ["ds_read_b128 %s, v%d offset:%d"%(vr(fr,4),KADDR+T,st*16384+kb*8192)],p,fr))
        return out
    def pv_ms(t,p,ss):
        st=(9+t)&3; out=[]
        for s in ss:
            for b in range(4):
                fr=pslot(POOL); off=st*16384+s*4096
                out.append(M("v_mfma_f32_32x32x16_bf16 %s, %s, %s, %s"%(vr(OACC+16*b,16),vr(fr,4),vr(PR+4*s,4),vr(OACC+16*b,16)),
                    ["ds_read_b64_tr_b16 %s, v%d offset:%d"%(vr(fr,2),VADDR+b,off),
                     "ds_read_b64_tr_b16 %s, v%d offset:%d"%(vr(fr+2,2),VADDR+b,off+2048)],p,fr))
        return out
    def w1(t):
        S=Sreg(t); it=[]
        it.append("v_max3_f32 v%d, v%d, v%d, v%d"%(VMX,S,S+1,S+2))
        it.append("v_max3_f32 v%d, v%d, v%d, v%d"%(TMP,S+3,S+4,S+5))
        for i in range(6,32,4):
            it.append("v_max3_f32 v%d, v%d, v%d, v%d"%(VMX,VMX,S+i,S+i+1))
            if i+3<32: it.append("v_max3_f32 v%d, v%d, v%d, v%d"%(TMP,TMP,S+i+2,S+i+3))
        it.append("v_max_f32 v%d, v%d, v%d"%(VMX,VMX,TMP))
        it.append("v_mov_b32 v%d, v%d"%(TMP,VMX))
        it.append("v_permlane32_swap_b32 v%d, v%d"%(VMX,TMP))
        it.append("v_max_f32 v%d, v%d, v%d"%(VMX,VMX,TMP))
        it.append("v_sub_f32 v%d, v%d, v%d"%(TMP,VMX,MREF))
        def dec():
            lblc[0]+=1; L="Ldec%d"%lblc[0]
            e("v_cmp_lt_f32 vcc, s%d, v%d"%(sT,TMP))
            e("s_cbranch_vccz %s"%L)
            k.rare=True
            e("v_max_f32 v%d, v%d, v%d"%(TMP,MREF,VMX))
            e("v_sub_f32 v%d, v%d, v%d"%(TMP2,MREF,TMP))
            e("v_mul_f32 v%d, s%d, v%d"%(TMP2,sC,TMP2))
            e("v_exp_f32 v%d, v%d"%(ALPHA,TMP2))
            e("v_mov_b32 v%d, v%d"%(MREF,TMP))
            e("v_mul_f32 v%d, s%d, v%d"%(MC,sC,TMP))
            e("s_mov_b32 s%d, 1"%sFLAG)
            k.rare=False
            e(L+":")
        it.append(dec)
        return it
    def wexp(t,kb):
        S=Sreg(t)+16*kb; it=[]
        for i in range(16):
            it.append("v_fma_f32 v%d, v%d, s%d, -v%d"%(S+i,S+i,sC,MC))
        f=it; x=["v_exp_f32 v%d, v%d"%(S+i,S+i) for i in range(16)]
        a=[]
        for i in range(16):
            if kb==0 and i==0: a.append("v_mov_b32 v%d, v%d"%(LS,S))
            else: a.append("v_add_f32 v%d, v%d, v%d"%(LS,LS,S+i))
        seq=[]
        for i in range(16+4):
            if i<16: seq.append(f[i])
            if 0<=i-2<16: seq.append(x[i-2])
            if 0<=i-4<16: seq.append(a[i-4])
        return seq
    def wcvt(t,kb):
        S=Sreg(t)+16*kb
        return ["v_cvt_pk_bf16_f32 v%d, v%d, v%d"%(PR+8*kb+i,S+2*i,S+2*i+1) for i in range(8)]
    def rescale():
        lblc[0]+=1; L="Lrs%d"%lblc[0]
        e("s_cmp_eq_u32 s%d, 0"%sFLAG)
        e("s_cbranch_scc1 %s"%L)
        k.rare=True
        e("s_nop 15")
        for i in range(64): e("v_mul_f32 v%d, v%d, v%d"%(OACC+i,ALPHA,OACC+i))
        e("v_mul_f32 v%d, v%d, v%d"%(LSUM,ALPHA,LSUM))
        e("s_mov_b32 s%d, 0"%sFLAG)
        e("s_nop 1")
        k.rare=False
        e(L+":")
    pool_ctr[0]=0
    st2={'period':9,'nr':0}
    m0=qk_ms(0,9)
    emit_stream(k,m0,{},st2)
    fb0=w1(0)+wexp(0,0); nb0=len(fb0)*12//16
    for x in fb0[:nb0]:
        x() if callable(x) else e(x)
    def iteration(t,tt,final):
        p=10+tt
        ms=[]; ev={}
        carried=iteration.carry
        ms+=carried
        doqk = not (final and tt==3)
        if doqk: ms+=qk_ms(tt+1,p)
        b0=len(ms)
        pv=pv_ms(tt,p,[0,1,2,3])
        ms+=pv[:12]
        iteration.carry=pv[12:]
        ms_all=ms+iteration.carry
        dm=[]
        if not final: dm=[('V',p+2),('K',p+3)]
        elif tt==0: dm=[('V',p+2)]
        def topf():
            need=[('K',p),('V',p-1)]
            n=k.wait_vm(need)
            ps=stamp(k) if (final or tt==0) else (lambda:None)
            e("s_waitcnt vmcnt(%d) lgkmcnt(0)"%n); k.lg_done=k.lg
            ps()
            e("s_barrier")
            for sd,it in dm: dma_item(sd,it)
            if final and tt==3: wo_pack_loads(k)
        ev[0]=[topf]
        for i,l in spread(iteration.prev_late,[1,2,3,4]).items(): ev.setdefault(i,[]).extend(l)
        a_slots=list(range(5,b0)) if doqk else []
        fa=wexp(tt,1)[:0]
        lateA = wcvt(tt,0)+wexp(tt,1)+wcvt(tt,1)+["v_add_f32 v%d, v%d, v%d"%(LSUM,LSUM,LS)]
        if doqk:
            ev.setdefault(5,[]).append(rescale)
            for i,l in spread(lateA,list(range(5,b0))).items(): ev.setdefault(i,[]).extend(l)
        else:
            ev.setdefault(4,[]).append(rescale)
            ev.setdefault(4,[]).extend(lateA)
        if doqk:
            fb=w1(tt+1)+wexp(tt+1,0)
            nb=len(fb)*12//16
            for i,l in spread(fb[:nb],list(range(b0+1,len(ms)))+[len(ms)]).items(): ev.setdefault(i,[]).extend(l)
            iteration.late=fb[nb:]
        else:
            iteration.late=[]
        iteration.prev_late=iteration.late
        stt={'period':p,'nr':0}
        nr=0
        for i,m in enumerate(ms):
            for x in ev.get(i,[]): x() if callable(x) else e(x)
            while nr<len(ms_all) and nr<=i+LOOKAHEAD:
                mm=ms_all[nr]
                if mm.done is None:
                    d=0
                    for r in mm.reads: d=k.ds(r)
                    mm.done=d
                nr+=1
            if m.done: k.wait_lg(m.done)
            e(m.text)
        for x in ev.get(len(ms),[]): x() if callable(x) else e(x)
    dummy=[]
    for b in range(4):
        fr=pslot(POOL)
        mm=M("v_mfma_f32_32x32x16_bf16 %s, %s, %s, %s"%(vr(OACC+16*b,16),vr(fr,4),vr(PR+12,4),vr(OACC+16*b,16)),[],0,fr); mm.done=0
        dummy.append(mm)
    iteration.carry=dummy; iteration.prev_late=fb0[nb0:]
    for i in range(16): e("v_mov_b32 v%d, 0"%(POOL+i))
    e("s_mov_b32 s%d, 0"%sLOOP)
    pre_len=len(k.l)
    e("Lmain:")
    body_start=len(k.l)
    vm_entry=list(k.vm)
    prev_late_entry=iteration.prev_late
    for tt in range(4): iteration(None,tt,False)
    e("s_add_u32 s%d, s%d, 1"%(sLOOP,sLOOP)); e("s_cmp_lt_u32 s%d, 3"%sLOOP); e("s_cbranch_scc1 Lmain")
    body_end=len(k.l)
    rel=lambda l:[(a,b) if isinstance((a,b),tuple) else None for a,b in l]
    assert len(k.vm)==len(vm_entry),(k.vm,vm_entry)
    k.vm=list(vm_entry)
    for tt in range(4): iteration(None,tt,True)
    for m in iteration.carry:
        if m.done: k.wait_lg(m.done)
        e(m.text)
    e("v_mov_b32 v%d, v%d"%(TMP,LSUM))
    e("v_permlane32_swap_b32 v%d, v%d"%(LSUM,TMP))
    e("v_add_f32 v%d, v%d, v%d"%(LSUM,LSUM,TMP))
    e("v_rcp_f32 v%d, v%d"%(LSUM,LSUM))
    e("v_bfe_u32 v%d, v%d, 4, 1"%(T0,LANE)); e("v_lshrrev_b32 v%d, 5, v%d"%(T2,LANE)); e("v_and_b32 v%d, 15, v%d"%(T3,LANE))
    e("v_lshlrev_b32 v%d, 4, v%d"%(T3,T3)); e("v_lshl_add_u32 v%d, v%d, 8, v%d"%(T3,T2,T3)); e("v_lshl_add_u32 v%d, v%d, 10, v%d"%(T3,T0,T3))
    e("s_lshl_b32 s%d, s%d, 1"%(sT0,sB)); e("s_lshr_b32 s%d, s%d, 1"%(sT1,sQB)); e("s_add_u32 s%d, s%d, s%d"%(sT0,sT0,sT1)); e("s_lshl_b32 s%d, s%d, 19"%(sT0,sT0))
    e("s_lshl_b32 s%d, s%d, 1"%(sT1,sHKV)); e("s_add_u32 s%d, s%d, s%d"%(sT1,sT1,sHQ)); e("s_lshl_b32 s%d, s%d, 14"%(sT1,sT1)); e("s_add_u32 s%d, s%d, s%d"%(sT0,sT0,sT1))
    e("s_and_b32 s%d, s%d, 1"%(sT1,sQB)); e("s_lshl_b32 s%d, s%d, 11"%(sT1,sT1)); e("s_add_u32 s%d, s%d, s%d"%(sT0,sT0,sT1))
    for b in range(4):
        for i in range(16): e("v_mul_f32 v%d, v%d, v%d"%(OACC+16*b+i,LSUM,OACC+16*b+i))
        for i in range(8): e("v_cvt_pk_bf16_f32 v%d, v%d, v%d"%(S1+8*b+i,OACC+16*b+2*i,OACC+16*b+2*i+1))
        for t in range(2):
            k.vmem("buffer_store_dwordx4 %s, v%d, s[%d:%d], s%d offen offset:%d"%(vr(S1+8*b+4*t,4),T3,SRD_O,SRD_O+3,sT0,512*t),"o")
        if b<3: e("s_add_u32 s%d, s%d, 4096"%(sT0,sT0))
    wo_pack_finish(k)
    if STAMPS:
        ps=stamp(k); e("s_waitcnt vmcnt(0) lgkmcnt(0)"); ps()
        e("s_add_u32 s%d, s%d, 0x4000000"%(SRD_WP,PTR+20)); e("s_addc_u32 s%d, s%d, 0"%(SRD_WP+1,PTR+21)); e("s_and_b32 s%d, s%d, 0xffff"%(SRD_WP+1,SRD_WP+1))
        e("s_mov_b32 s%d, 0x1000000"%(SRD_WP+2))
        e("s_lshl_b32 s%d, s2, 3"%sT0); e("s_add_u32 s%d, s%d, s%d"%(sT0,sT0,sW)); e("s_lshl_b32 s%d, s%d, 8"%(sT0,sT0))
        e("v_lshlrev_b32 v%d, 2, v%d"%(T0,LANE))
        e("buffer_store_dword v255, v%d, s[%d:%d], s%d offen"%(T0,SRD_WP,SRD_WP+3,sT0))
    e("Lattn_done:"); e("s_endpgm")
    L=k.l
    fix_hazards(L)
    body=L[body_start:body_end]
    for _ in range(2):
        fix_hazards(body, ctx=L[body_end-40:body_end])
    fix_hazards(L)
    return render(L)

def _dma(k,side,item):
    e=k.e
    if side=='X':
        e("s_add_u32 m0, s%d, %d"%(sW2K,131072+(item&1)*16384))
        e("s_mov_b32 s%d, %d"%(sT4,item*128)); e("s_mov_b32 s%d, %d"%(sT5,item*128+8192))
        k.vmem("buffer_load_dwordx4 v%d, s[%d:%d], s%d offen lds"%(XD0,SRD_X,SRD_X+3,sT4),(side,item))
        k.vmem("buffer_load_dwordx4 v%d, s[%d:%d], s%d offen offset:1024 lds"%(XD1,SRD_X,SRD_X+3,sT5),(side,item))
        return
    st=item&3
    base=(0 if side=='K' else 65536)+st*16384
    e("s_add_u32 m0, s%d, %d"%(sW2K,base))
    if item<=8:
        so=item*64*8192+(0 if side=='K' else 256)
        e("s_mov_b32 s%d, %d"%(sT4,so)); e("s_mov_b32 s%d, %d"%(sT5,so+31744))
        k.vmem("buffer_load_dwordx4 v%d, s[%d:%d], s%d offen lds"%(VOFFW,SRD_WQ,SRD_WQ+3,sT4),(side,item))
        k.vmem("buffer_load_dwordx4 v%d, s[%d:%d], s%d offen offset:1024 lds"%(VOFFW,SRD_WQ,SRD_WQ+3,sT5),(side,item))
    else:
        if side=='K':
            k.vmem("buffer_load_dwordx4 v%d, s[%d:%d], s%d offen nt lds"%(VOFFK0,SRD_K,SRD_K+3,sKOFF),(side,item))
            k.vmem("buffer_load_dwordx4 v%d, s[%d:%d], s%d offen offset:1024 nt lds"%(VOFFK1,SRD_K,SRD_K+3,sKOFF),(side,item))
            e("s_add_u32 s%d, s%d, 16384"%(sKOFF,sKOFF)); e("s_and_b32 s%d, s%d, 0x3ffff"%(sKOFF,sKOFF))
        else:
            k.vmem("buffer_load_dwordx4 v%d, s[%d:%d], s%d offen nt lds"%(VOFFV,SRD_V,SRD_V+3,sVOFF),(side,item))
            k.vmem("buffer_load_dwordx4 v%d, s[%d:%d], s%d offen offset:1024 nt lds"%(VOFFV,SRD_V,SRD_V+3,sVOFF),(side,item))
            e("s_add_u32 s%d, s%d, 16384"%(sVOFF,sVOFF)); e("s_and_b32 s%d, s%d, 0x3ffff"%(sVOFF,sVOFF))

if __name__=="__main__":
    from gen2 import gen_outproj
    hdr=open("cdna_kernels/%s.s.ref"%NAME).read().split("; Override launch")[0]
    out=hdr
    out+="; @launch kernel=attn_kernel grid=(512,1,1) block=(512,1,1) lds=163840\n"
    out+="; @launch kernel=outproj_kernel grid=(256,1,1) block=(256,1,1) lds=151552\n"
    out+='.amdgcn_target "amdgcn-amd-amdhsa--gfx950"\n.text\n'
    out+=".globl attn_kernel\n.p2align 8\n.type attn_kernel,@function\nattn_kernel:\n"
    out+=main()
    out+=".globl outproj_kernel\n.p2align 8\n.type outproj_kernel,@function\noutproj_kernel:\n"
    out+=gen_outproj()
    out+='.section .rodata,"a"\n'
    for nm,v,acc in (("attn_kernel",256,256),("outproj_kernel",400,256)):
        out+=""".p2align 6
.amdhsa_kernel %s
  .amdhsa_next_free_vgpr %d
  .amdhsa_next_free_sgpr 102
  .amdhsa_accum_offset %d
  .amdhsa_group_segment_fixed_size 0
  .amdhsa_kernarg_size 104
  .amdhsa_user_sgpr_count 2
  .amdhsa_user_sgpr_kernarg_segment_ptr 1
  .amdhsa_system_sgpr_workgroup_id_x 1
.end_amdhsa_kernel
"""%(nm,v,acc)
    open(sys.argv[1] if len(sys.argv)>1 else "cdna_kernels/%s.s"%NAME,"w").write(out)
```

```python
import sys, math
from asmlib import *

NAME="concat_heads__gqa_block_cached__gqa_block_cached__near_ridge"
C_SCALE = math.log2(math.e)/math.sqrt(128.0)
import struct
def f2u(x): return struct.unpack("<I",struct.pack("<f",x))[0]
T_RAW = 8.0/C_SCALE

LOOKAHEAD=5
import os
PK=int(os.environ.get('PK','0')); LS2=232; WARM1=int(os.environ.get('WARM1','0')); WARM2=int(os.environ.get('WARM2','1')); WARM2T=int(os.environ.get('WARM2T','1'))
STAMPS=bool(os.environ.get("STAMPS"))
stamp_ctr=[0]
def stamp(k):
    if not STAMPS: return lambda: None
    k.e("s_memtime s[60:61]")
    idx=stamp_ctr[0]; stamp_ctr[0]+=1
    def post(): k.e("v_writelane_b32 v255, s60, %d"%idx)
    return post

class K:
    def __init__(s):
        s.l=[]; s.vm=[]
        s.lg=0
        s.lg_done=0
        s.rare=False
    def e(s,t):
        s.l.append(I(t,s.rare)); return s.l[-1]
    def vmem(s,t,tag):
        s.e(t); s.vm.append(tag)
    def wait_vm(s,tags,extra=""):
        last=-1
        for i,t in enumerate(s.vm):
            if t in tags: last=i
        n=len(s.vm)-1-last
        s.vm=s.vm[last+1:]
        assert n<=63
        return n
    def ds(s,t):
        s.e(t); s.lg+=1; return s.lg
    def wait_lg(s,idx):
        if idx<=s.lg_done: return
        n=s.lg-idx
        assert n<=15,n
        s.e("s_waitcnt lgkmcnt(%d)"%n); s.lg_done=idx

def vr(a,n=1): return "v%d"%a if n==1 else "v[%d:%d]"%(a,a+n-1)

OACC=0; QF=64; S0=96; S1=128; PR=160; POOL=176; KADDR=208; VADDR=216
MREF=220; MC=221; LSUM=222; LS=223; ALPHA=224; VMX=225; TMP=226; TMP2=227; TMP3=228; TMP4=229
XF=64; XPOOL=64; XADDR=96; XD0=100; XD1=101; XWARM=102; XWD=104; POOLQ=208; WADDR=240; VOFFW=244; VOFFK0=245; VOFFK1=246; VOFFV=247
T0=248;T1=249;T2=250;T3=251;T4=252;T5=253;T6=254;T7=255
SRD_X=8; SRD_WQ=12; SRD_K=16; SRD_V=20; SRD_O=24; SRD_WO=28; SRD_WP=32
sW=36; sW2K=37; sKOFF=38; sVOFF=39; sC=40; sT=41; sFLAG=42; sLOOP=43; sHQ=44; sQB=45; sB=46; sHKV=47; sBLK=48
sT0=50; sT1=51; sT2=52; sT3=53; sT4=54;sT5=55
PTR=64

def gen_attn():
    k=K(); e=k.e
    e("s_cmp_ge_u32 s2, 512"); e("s_cbranch_scc1 Lattn_done")
    e("s_load_dwordx16 s[%d:%d], s[0:1], 0"%(PTR,PTR+15))
    e("s_load_dwordx4 s[%d:%d], s[0:1], 64"%(PTR+16,PTR+19))
    e("s_load_dwordx2 s[%d:%d], s[0:1], 96"%(PTR+20,PTR+21))
    e("s_and_b32 s%d, s2, 7"%sT0)
    e("s_lshr_b32 s%d, s2, 3"%sT1)
    e("s_lshr_b32 s%d, s%d, 2"%(sBLK,sT0))
    e("s_and_b32 s%d, s%d, 3"%(sT2,sT0))
    e("s_lshl_b32 s%d, s%d, 2"%(sT2,sT2))
    e("s_and_b32 s%d, s%d, 3"%(sT3,sT1))
    e("s_add_u32 s%d, s%d, s%d"%(sB,sT2,sT3))
    e("s_lshr_b32 s%d, s%d, 2"%(sHKV,sT1))
    e("v_lshrrev_b32 v%d, 6, v0"%T0)
    e("v_and_b32 v%d, 63, v0"%T1)
    e("v_readfirstlane_b32 s%d, v%d"%(sW,T0))
    if STAMPS:
        e("s_memtime s[62:63]"); stamp_ctr[0]+=1
    e("s_waitcnt lgkmcnt(0)")
    e("s_cmp_eq_u32 s%d, 0"%sBLK)
    for i in range(5):
        e("s_cselect_b32 s%d, s%d, s%d"%(90+2*i,PTR+2*i,PTR+10+2*i))
        e("s_cselect_b32 s%d, s%d, s%d"%(91+2*i,PTR+2*i+1,PTR+10+2*i+1))
    X,KP,VP,WQ,WO=90,92,94,96,98
    def srd(d,lo,hi,offs,size):
        if offs is None:
            e("s_mov_b32 s%d, s%d"%(d,lo)); e("s_and_b32 s%d, s%d, 0xffff"%(d+1,hi))
        else:
            e("s_add_u32 s%d, s%d, s%d"%(d,lo,offs)); e("s_addc_u32 s%d, s%d, 0"%(d+1,hi))
            e("s_and_b32 s%d, s%d, 0xffff"%(d+1,d+1))
        if isinstance(size,int): e("s_mov_b32 s%d, %d"%(d+2,size))
        else: e("s_mov_b32 s%d, s%d"%(d+2,size[0]))
        e("s_mov_b32 s%d, 0x20000"%(d+3))
    e("s_mul_i32 s%d, s%d, 147456"%(sT0,sB)); srd(SRD_X,X,X+1,sT0,147456)
    e("s_lshl_b32 s%d, s%d, 9"%(sT0,sHKV)); e("s_sub_u32 s%d, 4718592, s%d"%(sT1,sT0)); srd(SRD_WQ,WQ,WQ+1,sT0,(sT1,))
    e("s_lshl_b32 s%d, s%d, 4"%(sT0,sB)); e("s_add_u32 s%d, s%d, s%d"%(sT0,sT0,sHKV))
    e("s_lshl_b32 s%d, s%d, 18"%(sT1,sT0))
    srd(SRD_K,KP,KP+1,sT1,262144); srd(SRD_V,VP,VP+1,sT1,262144)
    e("s_lshl_b32 s%d, s%d, 24"%(sT1,sBLK)); srd(SRD_O,PTR+20,PTR+21,sT1,16777216)
    srd(SRD_WO,WO,WO+1,None,4718592)
    e("s_mul_i32 s%d, s%d, 4718592"%(sT1,sBLK)); e("s_add_u32 s%d, s%d, 33554432"%(sT1,sT1)); srd(SRD_WP,PTR+20,PTR+21,sT1,4718592)
    e("s_lshl_b32 s%d, s%d, 11"%(sW2K,sW))
    e("s_lshr_b32 s%d, s%d, 2"%(sHQ,sW))
    e("s_and_b32 s%d, s%d, 3"%(sQB,sW))
    e("s_mov_b32 s%d, 0x%08x"%(sC,f2u(C_SCALE))); e("s_mov_b32 s%d, 0x%08x"%(sT,f2u(T_RAW)))
    e("s_mov_b32 s%d, 0"%sFLAG)
    LANE=T1
    e("s_mov_b32 s59, s%d"%sT0)
    e("v_and_b32 v%d, 31, v%d"%(T4,LANE))
    e("v_lshrrev_b32 v%d, 5, v%d"%(T5,LANE))
    e("v_lshrrev_b32 v%d, 3, v%d"%(T6,LANE))
    e("s_lshl_b32 s%d, s%d, 4"%(sT4,sW))
    e("v_add_u32 v%d, s%d, v%d"%(T7,sT4,T6))
    e("v_mul_u32_u24 v%d, 1152, v%d"%(T7,T7))
    e("v_lshrrev_b32 v%d, 1, v%d"%(T6,T6))
    e("v_and_b32 v%d, 7, v%d"%(T0,LANE)); e("v_xor_b32 v%d, v%d, v%d"%(T0,T0,T6))
    e("v_lshl_add_u32 v%d, v%d, 4, v%d"%(XD0,T0,T7))
    e("v_xor_b32 v%d, 64, v%d"%(XD1,XD0))
    e("v_bfe_u32 v%d, v%d, 1, 3"%(T0,LANE)); e("v_xor_b32 v%d, v%d, v%d"%(T0,T0,T5)); e("v_lshlrev_b32 v%d, 4, v%d"%(T0,T0))
    e("v_lshl_add_u32 v%d, v%d, 7, v%d"%(T0,T4,T0))
    e("s_lshl_b32 s%d, s%d, 12"%(sT4,sQB)); e("s_add_u32 s%d, s%d, 131072"%(sT4,sT4))
    e("v_add_u32 v%d, s%d, v%d"%(XADDR,sT4,T0))
    for q in range(1,4): e("v_xor_b32 v%d, %d, v%d"%(XADDR+q,32*q,XADDR))
    e("s_mul_i32 s%d, s%d, 192"%(sT4,sW)); e("v_add_u32 v%d, s%d, v%d"%(XWARM,sT4,LANE)); e("v_lshlrev_b32 v%d, 7, v%d"%(XWARM,XWARM))
    e("v_lshrrev_b32 v%d, 4, v%d"%(T6,LANE))
    e("v_and_b32 v%d, 15, v%d"%(T7,LANE))
    e("s_lshl_b32 s%d, s%d, 3"%(sT4,sW))
    e("v_add_u32 v%d, s%d, v%d"%(T0,sT4,T6))
    e("v_and_b32 v%d, 15, v%d"%(T2,T0)); e("v_xor_b32 v%d, v%d, v%d"%(T2,T2,T7))
    e("v_lshlrev_b32 v%d, 4, v%d"%(T2,T2)); e("v_lshl_add_u32 v%d, v%d, 8, v%d"%(VOFFK0,T0,T2))
    e("v_xor_b32 v%d, 64, v%d"%(VOFFK1,VOFFK0))
    e("v_lshlrev_b32 v%d, 2, v%d"%(T2,T6)); e("v_xor_b32 v%d, v%d, v%d"%(T2,T2,T7)); e("v_lshlrev_b32 v%d, 4, v%d"%(T2,T2))
    e("v_lshl_add_u32 v%d, v%d, 8, v%d"%(VOFFV,T0,T2))
    e("v_lshl_add_u32 v%d, v%d, 13, v%d"%(VOFFW,T0,T2))
    e("v_bfe_u32 v%d, v%d, 2, 2"%(T0,LANE))
    e("v_bfe_u32 v%d, v%d, 4, 1"%(T2,LANE))
    e("v_and_b32 v%d, 1, v%d"%(T3,LANE))
    e("v_lshl_add_u32 v%d, v%d, 1, v%d"%(T2,T2,T3))
    e("v_lshlrev_b32 v%d, 2, v%d"%(T3,T0))
    e("v_xor_b32 v%d, v%d, v%d"%(T2,T2,T3))
    e("v_lshlrev_b32 v%d, 4, v%d"%(T2,T2))
    e("v_bfe_u32 v%d, v%d, 1, 1"%(T3,LANE))
    e("v_lshl_add_u32 v%d, v%d, 3, v%d"%(T2,T3,T2))
    e("v_lshl_add_u32 v%d, v%d, 3, v%d"%(T3,T5,T0))
    e("v_lshl_add_u32 v%d, v%d, 8, v%d"%(T2,T3,T2))
    e("s_lshl_b32 s%d, s%d, 16"%(sT4,sHQ))
    e("v_add_u32 v%d, s%d, v%d"%(WADDR,sT4,T2))
    for b in range(1,4): e("v_xor_b32 v%d, %d, v%d"%(WADDR+b,64*b,WADDR))
    def dma_item(side,item):
        st=item&3
        base=(0 if side=='K' else 65536)+st*16384
        e("s_add_u32 m0, s%d, %d"%(sW2K,base))
        if item<=8:
            so=item*64*8192+(0 if side=='K' else 256)
            e("s_mov_b32 s%d, %d"%(sT4,so)); e("s_mov_b32 s%d, %d"%(sT5,so+31744))
            k.vmem("buffer_load_dwordx4 v%d, s[%d:%d], s%d offen lds"%(VOFFW,SRD_WQ,SRD_WQ+3,sT4),(side,item))
            k.vmem("buffer_load_dwordx4 v%d, s[%d:%d], s%d offen offset:1024 lds"%(VOFFW,SRD_WQ,SRD_WQ+3,sT5),(side,item))
        else:
            if side=='K':
                k.vmem("buffer_load_dwordx4 v%d, s[%d:%d], s%d offen nt lds"%(VOFFK0,SRD_K,SRD_K+3,sKOFF),(side,item))
                k.vmem("buffer_load_dwordx4 v%d, s[%d:%d], s%d offen offset:1024 nt lds"%(VOFFK1,SRD_K,SRD_K+3,sKOFF),(side,item))
                e("s_add_u32 s%d, s%d, 16384"%(sKOFF,sKOFF)); e("s_and_b32 s%d, s%d, 0x3ffff"%(sKOFF,sKOFF))
            else:
                k.vmem("buffer_load_dwordx4 v%d, s[%d:%d], s%d offen nt lds"%(VOFFV,SRD_V,SRD_V+3,sVOFF),(side,item))
                k.vmem("buffer_load_dwordx4 v%d, s[%d:%d], s%d offen offset:1024 nt lds"%(VOFFV,SRD_V,SRD_V+3,sVOFF),(side,item))
                e("s_add_u32 s%d, s%d, 16384"%(sVOFF,sVOFF)); e("s_and_b32 s%d, s%d, 0x3ffff"%(sVOFF,sVOFF))
    e("s_lshr_b32 s%d, s2, 4"%sT4); e("s_add_u32 s%d, s%d, s2"%(sT4,sT4)); e("s_and_b32 s%d, s%d, 15"%(sT4,sT4))
    e("s_lshl_b32 s%d, s%d, 14"%(sKOFF,sT4)); e("s_mov_b32 s%d, s%d"%(sVOFF,sKOFF))
    _dma(k,'X',0); dma_item('K',0); dma_item('V',0)
    _dma(k,'X',1); dma_item('K',1); dma_item('V',1); dma_item('K',2)
    e("s_barrier")
    for i in range(3):
        e("s_mov_b32 s%d, %d"%(sT4,8192*i))
        k.vmem("buffer_load_dword v%d, v%d, s[%d:%d], s%d offen"%(XWD+i,XWARM,SRD_X,SRD_X+3,sT4),"warm")
    if WARM1:
        e("s_lshl_b32 s%d, s%d, 6"%(sT4,sW)); e("v_add_u32 v%d, s%d, v%d"%(T0,sT4,LANE))
        e("v_lshrrev_b32 v%d, 2, v%d"%(T0,T0)); e("v_lshlrev_b32 v%d, 13, v%d"%(T0,T0))
        e("v_and_b32 v%d, 3, v%d"%(T2,LANE)); e("v_lshl_add_u32 v%d, v%d, 7, v%d"%(T0,T2,T0))
        e("v_add_u32 v%d, %d, v%d"%(T0,192*8192,T0))
        for i in range(3):
            k.vmem("buffer_load_dword v%d, v%d, s[%d:%d], 0 offen"%(107+i,T0,SRD_WQ,SRD_WQ+3),"warm")
            if i<2: e("v_add_u32 v%d, %d, v%d"%(T0,1048576,T0))
    for i in range(64): e("v_mov_b32 v%d, 0"%(OACC+i))
    return k

def wo_pack_loads(k):
    e=k.e; LANE=T1
    e("s_mov_b32 s%d, s59"%sT0)
    e("v_lshrrev_b32 v%d, 5, v%d"%(T2,LANE))
    e("v_bfe_u32 v%d, v%d, 4, 1"%(T3,LANE))
    e("v_lshlrev_b32 v%d, 2, v%d"%(T2,T2))
    e("v_add_u32 v%d, v%d, v%d"%(T2,T2,T3))
    e("v_mul_u32_u24 v%d, 4608, v%d"%(T2,T2))
    e("v_and_b32 v%d, 15, v%d"%(T3,LANE))
    e("v_lshl_add_u32 v%d, v%d, 1, v%d"%(T2,T3,T2))
    e("v_add_u32 v%d, 9216, v%d"%(T3,T2))
    e("s_lshr_b32 s%d, s%d, 1"%(sT1,sT0))
    e("s_and_b32 s%d, s%d, 1"%(sT2,sT0)); e("s_mul_i32 s%d, s%d, 18"%(sT2,sT2))
    e("s_mul_i32 s%d, s%d, 36864"%(sT3,sT1))
    WPK=S0
    for f in range(3):
        e("s_add_u32 s%d, s%d, %d"%(sT4,sW,8*f)); e("s_min_u32 s%d, s%d, 17"%(sT4,sT4)); e("s_add_u32 s%d, s%d, s%d"%(sT4,sT4,sT2))
        e("s_lshl_b32 s%d, s%d, 5"%(sT5,sT4)); e("s_add_u32 s%d, s%d, s%d"%(sT5,sT5,sT3))
        for j in range(8):
            k.vmem("buffer_load_ushort v%d, v%d, s[%d:%d], s%d offen offset:%d"%(WPK+8*f+j, T3 if j>=4 else T2, SRD_WO,SRD_WO+3,sT5,(j&3)*1152),"wo")
        e("s_mul_i32 s%d, s%d, 36"%(56+f,sT1)); e("s_add_u32 s%d, s%d, s%d"%(56+f,56+f,sT4)); e("s_lshl_b32 s%d, s%d, 10"%(56+f,56+f))
def wo_pack_finish(k):
    e=k.e; LANE=T1; WPK=S0
    n=k.wait_vm(["wo"]); e("s_waitcnt vmcnt(%d)"%n)
    e("v_lshlrev_b32 v%d, 4, v%d"%(T0,LANE))
    for f in range(3):
        for j in range(4):
            e("v_lshl_or_b32 v%d, v%d, 16, v%d"%(WPK+8*f+j,WPK+8*f+2*j+1,WPK+8*f+2*j))
        k.vmem("buffer_store_dwordx4 %s, v%d, s[%d:%d], s%d offen"%(vr(WPK+8*f,4),T0,SRD_WP,SRD_WP+3,56+f),"wps")

class M:
    def __init__(s,text,reads,gate,pool):
        s.text=text; s.reads=reads; s.gate=gate; s.pool=pool; s.done=None

def emit_stream(k,ms,events,state):
    nr=state.get('nr',0)
    for i,m in enumerate(ms):
        for ev in events.get(i,[]):
            if callable(ev): ev()
            else: k.e(ev)
        while nr<len(ms) and nr<=i+LOOKAHEAD and ms[nr].gate<=state['period']:
            if ms[nr].done is None:
                d=0
                for r in ms[nr].reads: d=k.ds(r)
                ms[nr].done=d if ms[nr].reads else 0
            nr+=1
        assert m.done is not None,(i,m.text)
        if m.done: k.wait_lg(m.done)
        k.e(m.text)
    for ev in events.get(len(ms),[]):
        if callable(ev): ev()
        else: k.e(ev)
    state['nr']=nr

def spread(items,slots):
    out={}
    n=len(items); ns=len(slots)
    pos=0
    for si,sl in enumerate(slots):
        tgt=round(n*(si+1)/ns)
        out.setdefault(sl,[]).extend(items[pos:tgt]); pos=tgt
    return out

def main():
    k=gen_attn(); e=k.e
    LANE=T1
    pool_ctr=[0]
    def pslot(base):
        s=pool_ctr[0]%8; pool_ctr[0]+=1; return base+4*s
    state={'period':-1,'nr':0}
    def dma_item(side,item): return _dma(k,side,item)
    ms=[]; ev={}
    def top(p,need,dmas):
        def f():
            n=k.wait_vm(need)
            if STAMPS and p==0: e("v_writelane_b32 v255, s62, 0")
            ps=stamp(k) if p in (0,1,9) else (lambda:None)
            e("s_waitcnt vmcnt(%d) lgkmcnt(0)"%n); k.lg_done=k.lg
            ps()
            e("s_barrier")
            state['period']=p
            for sd,it in dmas: dma_item(sd,it)
        return f
    for p in range(9):
        st=p&3
        for s in range(4):
            for b in range(4):
                fr=pslot(POOLQ)
                off=st*16384+s*4096
                reads=["ds_read_b64_tr_b16 %s, v%d offset:%d"%(vr(fr,2),WADDR+b,off),
                       "ds_read_b64_tr_b16 %s, v%d offset:%d"%(vr(fr+2,2),WADDR+b,off+1024)]
                xr=XPOOL+((p&1)*4+s)*4
                if b==0: reads=["ds_read_b128 %s, v%d offset:%d"%(vr(xr,4),XADDR+s,(p&1)*16384)]+reads
                ms.append(M("v_mfma_f32_32x32x16_bf16 %s, %s, %s, %s"%(vr(OACC+16*b,16),vr(fr,4),vr(xr,4),vr(OACC+16*b,16)),reads,p,fr))
        idx=max(0,16*p-4)
        ev.setdefault(idx,[]).append(top(p,[('K',p),('V',p),('X',p)],([('X',p+1)] if 1<=p<=7 else [])+[('V',p+2),('K',p+3)]))
    ev.setdefault(16*9-4,[]).append(top(9,[('K',9)],[('V',11),('K',12)]))
    emit_stream(k,ms,ev,state)
    for i in range(32):
        e("v_cvt_pk_bf16_f32 v%d, v%d, v%d"%(QF+i,OACC+2*i,OACC+2*i+1))
    import os
    if os.environ.get("DEBUGQ"):
        e("s_lshl_b32 s%d, s%d, 4"%(sT0,sB)); e("s_add_u32 s%d, s%d, s%d"%(sT0,sT0,sHKV)); e("s_lshl_b32 s%d, s%d, 3"%(sT0,sT0)); e("s_add_u32 s%d, s%d, s%d"%(sT0,sT0,sW)); e("s_lshl_b32 s%d, s%d, 13"%(sT0,sT0))
        e("v_lshlrev_b32 v%d, 4, v%d"%(T0,LANE))
        for T in range(8):
            e("buffer_store_dwordx4 %s, v%d, s[%d:%d], s%d offen"%(vr(QF+4*T,4),T0,SRD_O,SRD_O+3,sT0)); e("s_add_u32 s%d, s%d, 1024"%(sT0,sT0))
        e("s_waitcnt vmcnt(0)"); e("s_endpgm")
    for i in range(64): e("v_mov_b32 v%d, 0"%(OACC+i))
    e("v_and_b32 v%d, 31, v%d"%(T0,LANE)); e("v_lshrrev_b32 v%d, 5, v%d"%(T2,LANE))
    e("v_and_b32 v%d, 15, v%d"%(T3,LANE)); e("v_xor_b32 v%d, v%d, v%d"%(T3,T3,T2))
    e("v_lshlrev_b32 v%d, 4, v%d"%(T3,T3)); e("v_lshl_add_u32 v%d, v%d, 8, v%d"%(KADDR,T0,T3))
    for T in range(1,8): e("v_xor_b32 v%d, %d, v%d"%(KADDR+T,32*T,KADDR))
    e("v_bfe_u32 v%d, v%d, 2, 2"%(T0,LANE))
    e("v_bfe_u32 v%d, v%d, 4, 1"%(T3,LANE))
    e("v_bfe_u32 v%d, v%d, 1, 1"%(T4,LANE))
    e("v_lshl_add_u32 v%d, v%d, 1, v%d"%(T3,T3,T4))
    e("v_lshlrev_b32 v%d, 2, v%d"%(T4,T0)); e("v_xor_b32 v%d, v%d, v%d"%(T3,T3,T4)); e("v_lshlrev_b32 v%d, 4, v%d"%(T3,T3))
    e("v_and_b32 v%d, 1, v%d"%(T4,LANE)); e("v_lshl_add_u32 v%d, v%d, 3, v%d"%(T3,T4,T3))
    e("v_lshl_add_u32 v%d, v%d, 2, v%d"%(T4,T2,T0))
    e("v_lshl_add_u32 v%d, v%d, 8, v%d"%(T3,T4,T3))
    e("v_add_u32 v%d, 0x10000, v%d"%(VADDR,T3))
    for b in range(1,4): e("v_xor_b32 v%d, %d, v%d"%(VADDR+b,64*b,VADDR))
    e("v_mov_b32 v%d, 0xf149f2ca"%MREF); e("v_mov_b32 v%d, 0"%LSUM); e("v_mov_b32 v%d, 0"%MC)
    for i in range(16): e("v_mov_b32 v%d, 0"%(PR+i))
    for i in range(32): e("v_mov_b32 v%d, 0"%(POOL+i))

    lblc=[0]
    def Sreg(t): return S0 if (t&1)==0 else S1
    def qk_ms(t,p):
        st=(9+t)&3; out=[]
        for kb in range(2):
            for T in range(8):
                fr=pslot(POOL)
                out.append(M("v_mfma_f32_32x32x16_bf16 %s, %s, %s, %s"%(vr(Sreg(t)+16*kb,16),vr(fr,4),vr(QF+4*T,4),
                     "0" if T==0 else vr(Sreg(t)+16*kb,16)),
                     ["ds_read_b128 %s, v%d offset:%d"%(vr(fr,4),KADDR+T,st*16384+kb*8192)],p,fr))
        return out
    def pv_ms(t,p,ss):
        st=(9+t)&3; out=[]
        for s in ss:
            for b in range(4):
                fr=pslot(POOL); off=st*16384+s*4096
                out.append(M("v_mfma_f32_32x32x16_bf16 %s, %s, %s, %s"%(vr(OACC+16*b,16),vr(fr,4),vr(PR+4*s,4),vr(OACC+16*b,16)),
                    ["ds_read_b64_tr_b16 %s, v%d offset:%d"%(vr(fr,2),VADDR+b,off),
                     "ds_read_b64_tr_b16 %s, v%d offset:%d"%(vr(fr+2,2),VADDR+b,off+2048)],p,fr))
        return out
    def w1(t):
        S=Sreg(t); it=[]
        it.append("v_max3_f32 v%d, v%d, v%d, v%d"%(VMX,S,S+1,S+2))
        it.append("v_max3_f32 v%d, v%d, v%d, v%d"%(TMP,S+3,S+4,S+5))
        for i in range(6,32,4):
            it.append("v_max3_f32 v%d, v%d, v%d, v%d"%(VMX,VMX,S+i,S+i+1))
            if i+3<32: it.append("v_max3_f32 v%d, v%d, v%d, v%d"%(TMP,TMP,S+i+2,S+i+3))
        it.append("v_max_f32 v%d, v%d, v%d"%(VMX,VMX,TMP))
        it.append("v_mov_b32 v%d, v%d"%(TMP,VMX))
        it.append("v_permlane32_swap_b32 v%d, v%d"%(VMX,TMP))
        it.append("v_max_f32 v%d, v%d, v%d"%(VMX,VMX,TMP))
        it.append("v_sub_f32 v%d, v%d, v%d"%(TMP,VMX,MREF))
        def dec():
            lblc[0]+=1; L="Ldec%d"%lblc[0]
            e("v_cmp_lt_f32 vcc, s%d, v%d"%(sT,TMP))
            e("s_cbranch_vccz %s"%L)
            k.rare=True
            e("v_max_f32 v%d, v%d, v%d"%(TMP,MREF,VMX))
            e("v_sub_f32 v%d, v%d, v%d"%(TMP2,MREF,TMP))
            e("v_mul_f32 v%d, s%d, v%d"%(TMP2,sC,TMP2))
            e("v_exp_f32 v%d, v%d"%(ALPHA,TMP2))
            e("v_mov_b32 v%d, v%d"%(MREF,TMP))
            e("v_mul_f32 v%d, s%d, v%d"%(MC,sC,TMP))
            e("s_mov_b32 s%d, 1"%sFLAG)
            k.rare=False
            e(L+":")
        it.append(dec)
        return it
    def wexp(t,kb):
        S=Sreg(t)+16*kb; it=[]
        if PK:
            f=["v_pk_fma_f32 v[%d:%d], v[%d:%d], s[%d:%d], v[%d:%d] op_sel:[0,0,1] op_sel_hi:[1,0,1] neg_lo:[0,0,1] neg_hi:[0,0,1]"%(S+2*i,S+2*i+1,S+2*i,S+2*i+1,sC,sC+1,MREF,MREF+1) for i in range(8)]
            x=["v_exp_f32 v%d, v%d"%(S+i,S+i) for i in range(16)]
            a=[]
            for i in range(8):
                if kb==0 and i==0: a.append(None)
                elif kb==0 and i==1: a.append("v_pk_add_f32 v[%d:%d], v[%d:%d], v[%d:%d]"%(LS2,LS2+1,S,S+1,S+2,S+3))
                else: a.append("v_pk_add_f32 v[%d:%d], v[%d:%d], v[%d:%d]"%(LS2,LS2+1,LS2,LS2+1,S+2*i,S+2*i+1))
            seq=[]
            for i in range(8+3):
                if i<8: seq.append(f[i])
                if 0<=i-1<8: seq.append(x[2*(i-1)]); seq.append(x[2*(i-1)+1])
                if 0<=i-3<8 and a[i-3]: seq.append(a[i-3])
            return seq
        for i in range(16):
            it.append("v_fma_f32 v%d, v%d, s%d, -v%d"%(S+i,S+i,sC,MC))
        f=it; x=["v_exp_f32 v%d, v%d"%(S+i,S+i) for i in range(16)]
        a=[]
        for i in range(16):
            if kb==0 and i==0: a.append("v_mov_b32 v%d, v%d"%(LS,S))
            else: a.append("v_add_f32 v%d, v%d, v%d"%(LS,LS,S+i))
        seq=[]
        for i in range(16+4):
            if i<16: seq.append(f[i])
            if 0<=i-2<16: seq.append(x[i-2])
            if 0<=i-4<16: seq.append(a[i-4])
        return seq
    def wcvt(t,kb):
        S=Sreg(t)+16*kb
        return ["v_cvt_pk_bf16_f32 v%d, v%d, v%d"%(PR+8*kb+i,S+2*i,S+2*i+1) for i in range(8)]
    def rescale():
        lblc[0]+=1; L="Lrs%d"%lblc[0]
        e("s_cmp_eq_u32 s%d, 0"%sFLAG)
        e("s_cbranch_scc1 %s"%L)
        k.rare=True
        e("s_nop 15")
        for i in range(64): e("v_mul_f32 v%d, v%d, v%d"%(OACC+i,ALPHA,OACC+i))
        e("v_mul_f32 v%d, v%d, v%d"%(LSUM,ALPHA,LSUM))
        e("s_mov_b32 s%d, 0"%sFLAG)
        e("s_nop 1")
        k.rare=False
        e(L+":")
    pool_ctr[0]=0
    st2={'period':9,'nr':0}
    m0=qk_ms(0,9)
    emit_stream(k,m0,{},st2)
    fb0=w1(0)+wexp(0,0); nb0=len(fb0)*12//16
    for x in fb0[:nb0]:
        x() if callable(x) else e(x)
    def iteration(t,tt,final):
        p=10+tt
        ms=[]; ev={}
        carried=iteration.carry
        ms+=carried
        doqk = not (final and tt==3)
        if doqk: ms+=qk_ms(tt+1,p)
        b0=len(ms)
        pv=pv_ms(tt,p,[0,1,2,3])
        ms+=pv[:12]
        iteration.carry=pv[12:]
        ms_all=ms+iteration.carry
        dm=[]
        if not final: dm=[('V',p+2),('K',p+3)]
        elif tt==0: dm=[('V',p+2)]
        def topf():
            need=[('K',p),('V',p-1)]
            n=k.wait_vm(need)
            ps=stamp(k) if (final or tt==0) else (lambda:None)
            e("s_waitcnt vmcnt(%d) lgkmcnt(0)"%n); k.lg_done=k.lg
            ps()
            e("s_barrier")
            for sd,it in dm: dma_item(sd,it)
            if final and tt==3: wo_pack_loads(k)
            if final and tt==WARM2T and WARM2:
                e("s_cmp_lt_u32 s%d, 8"%sHKV); e("s_cselect_b32 s%d, 4096, 0x40000000"%sT5)
                e("s_lshl_b32 s%d, s%d, 6"%(sT4,sW)); e("v_add_u32 v234, s%d, v%d"%(sT4,LANE))
                e("v_lshrrev_b32 v234, 2, v234"); e("v_lshlrev_b32 v234, 13, v234")
                e("v_and_b32 v240, 3, v%d"%LANE); e("v_lshl_add_u32 v234, v240, 7, v234")
                e("v_add_u32 v234, s%d, v234"%sT5)
                for i in range(5):
                    k.vmem("buffer_load_dword v%d, v234, s[%d:%d], 0 offen"%(235+i,SRD_WQ,SRD_WQ+3),"warm2")
                    if i<4: e("v_add_u32 v234, 1048576, v234")
        ev[0]=[topf]
        for i,l in spread(iteration.prev_late,[1,2,3,4]).items(): ev.setdefault(i,[]).extend(l)
        a_slots=list(range(5,b0)) if doqk else []
        fa=wexp(tt,1)[:0]
        lateA = wcvt(tt,0)+wexp(tt,1)+wcvt(tt,1)+(["v_add_f32 v%d, v%d, v%d"%(LSUM,LSUM,LS2),"v_add_f32 v%d, v%d, v%d"%(LSUM,LSUM,LS2+1)] if PK else ["v_add_f32 v%d, v%d, v%d"%(LSUM,LSUM,LS)])
        if doqk:
            ev.setdefault(5,[]).append(rescale)
            for i,l in spread(lateA,list(range(5,b0))).items(): ev.setdefault(i,[]).extend(l)
        else:
            ev.setdefault(4,[]).append(rescale)
            ev.setdefault(4,[]).extend(lateA)
        if doqk:
            fb=w1(tt+1)+wexp(tt+1,0)
            nb=len(fb)*12//16
            for i,l in spread(fb[:nb],list(range(b0+1,len(ms)))+[len(ms)]).items(): ev.setdefault(i,[]).extend(l)
            iteration.late=fb[nb:]
        else:
            iteration.late=[]
        iteration.prev_late=iteration.late
        stt={'period':p,'nr':0}
        nr=0
        for i,m in enumerate(ms):
            for x in ev.get(i,[]): x() if callable(x) else e(x)
            while nr<len(ms_all) and nr<=i+LOOKAHEAD:
                mm=ms_all[nr]
                if mm.done is None:
                    d=0
                    for r in mm.reads: d=k.ds(r)
                    mm.done=d
                nr+=1
            if m.done: k.wait_lg(m.done)
            e(m.text)
        for x in ev.get(len(ms),[]): x() if callable(x) else e(x)
    dummy=[]
    for b in range(4):
        fr=pslot(POOL)
        mm=M("v_mfma_f32_32x32x16_bf16 %s, %s, %s, %s"%(vr(OACC+16*b,16),vr(fr,4),vr(PR+12,4),vr(OACC+16*b,16)),[],0,fr); mm.done=0
        dummy.append(mm)
    iteration.carry=dummy; iteration.prev_late=fb0[nb0:]
    for i in range(16): e("v_mov_b32 v%d, 0"%(POOL+i))
    e("s_mov_b32 s%d, 0"%sLOOP)
    pre_len=len(k.l)
    e("Lmain:")
    body_start=len(k.l)
    vm_entry=list(k.vm)
    prev_late_entry=iteration.prev_late
    for tt in range(4): iteration(None,tt,False)
    e("s_add_u32 s%d, s%d, 1"%(sLOOP,sLOOP)); e("s_cmp_lt_u32 s%d, 3"%sLOOP); e("s_cbranch_scc1 Lmain")
    body_end=len(k.l)
    rel=lambda l:[(a,b) if isinstance((a,b),tuple) else None for a,b in l]
    assert len(k.vm)==len(vm_entry),(k.vm,vm_entry)
    k.vm=list(vm_entry)
    for tt in range(4): iteration(None,tt,True)
    for m in iteration.carry:
        if m.done: k.wait_lg(m.done)
        e(m.text)
    e("v_mov_b32 v%d, v%d"%(TMP,LSUM))
    e("v_permlane32_swap_b32 v%d, v%d"%(LSUM,TMP))
    e("v_add_f32 v%d, v%d, v%d"%(LSUM,LSUM,TMP))
    e("v_rcp_f32 v%d, v%d"%(LSUM,LSUM))
    e("v_bfe_u32 v%d, v%d, 4, 1"%(T0,LANE)); e("v_lshrrev_b32 v%d, 5, v%d"%(T2,LANE)); e("v_and_b32 v%d, 15, v%d"%(T3,LANE))
    e("v_lshlrev_b32 v%d, 4, v%d"%(T3,T3)); e("v_lshl_add_u32 v%d, v%d, 8, v%d"%(T3,T2,T3)); e("v_lshl_add_u32 v%d, v%d, 10, v%d"%(T3,T0,T3))
    e("s_lshl_b32 s%d, s%d, 1"%(sT0,sB)); e("s_lshr_b32 s%d, s%d, 1"%(sT1,sQB)); e("s_add_u32 s%d, s%d, s%d"%(sT0,sT0,sT1)); e("s_lshl_b32 s%d, s%d, 19"%(sT0,sT0))
    e("s_lshl_b32 s%d, s%d, 1"%(sT1,sHKV)); e("s_add_u32 s%d, s%d, s%d"%(sT1,sT1,sHQ)); e("s_lshl_b32 s%d, s%d, 14"%(sT1,sT1)); e("s_add_u32 s%d, s%d, s%d"%(sT0,sT0,sT1))
    e("s_and_b32 s%d, s%d, 1"%(sT1,sQB)); e("s_lshl_b32 s%d, s%d, 11"%(sT1,sT1)); e("s_add_u32 s%d, s%d, s%d"%(sT0,sT0,sT1))
    for b in range(4):
        for i in range(16): e("v_mul_f32 v%d, v%d, v%d"%(OACC+16*b+i,LSUM,OACC+16*b+i))
        for i in range(8): e("v_cvt_pk_bf16_f32 v%d, v%d, v%d"%(S1+8*b+i,OACC+16*b+2*i,OACC+16*b+2*i+1))
        for t in range(2):
            k.vmem("buffer_store_dwordx4 %s, v%d, s[%d:%d], s%d offen offset:%d"%(vr(S1+8*b+4*t,4),T3,SRD_O,SRD_O+3,sT0,512*t),"o")
        if b<3: e("s_add_u32 s%d, s%d, 4096"%(sT0,sT0))
    wo_pack_finish(k)
    if STAMPS:
        ps=stamp(k); e("s_waitcnt vmcnt(0) lgkmcnt(0)"); ps()
        e("s_add_u32 s%d, s%d, 0x4000000"%(SRD_WP,PTR+20)); e("s_addc_u32 s%d, s%d, 0"%(SRD_WP+1,PTR+21)); e("s_and_b32 s%d, s%d, 0xffff"%(SRD_WP+1,SRD_WP+1))
        e("s_mov_b32 s%d, 0x1000000"%(SRD_WP+2))
        e("s_lshl_b32 s%d, s2, 3"%sT0); e("s_add_u32 s%d, s%d, s%d"%(sT0,sT0,sW)); e("s_lshl_b32 s%d, s%d, 8"%(sT0,sT0))
        e("v_lshlrev_b32 v%d, 2, v%d"%(T0,LANE))
        e("buffer_store_dword v255, v%d, s[%d:%d], s%d offen"%(T0,SRD_WP,SRD_WP+3,sT0))
    e("Lattn_done:"); e("s_endpgm")
    L=k.l
    fix_hazards(L)
    body=L[body_start:body_end]
    for _ in range(2):
        fix_hazards(body, ctx=L[body_end-40:body_end])
    fix_hazards(L)
    return render(L)

def _dma(k,side,item):
    e=k.e
    if side=='X':
        e("s_add_u32 m0, s%d, %d"%(sW2K,131072+(item&1)*16384))
        e("s_mov_b32 s%d, %d"%(sT4,item*128)); e("s_mov_b32 s%d, %d"%(sT5,item*128+8192))
        k.vmem("buffer_load_dwordx4 v%d, s[%d:%d], s%d offen lds"%(XD0,SRD_X,SRD_X+3,sT4),(side,item))
        k.vmem("buffer_load_dwordx4 v%d, s[%d:%d], s%d offen offset:1024 lds"%(XD1,SRD_X,SRD_X+3,sT5),(side,item))
        return
    st=item&3
    base=(0 if side=='K' else 65536)+st*16384
    e("s_add_u32 m0, s%d, %d"%(sW2K,base))
    if item<=8:
        so=item*64*8192+(0 if side=='K' else 256)
        e("s_mov_b32 s%d, %d"%(sT4,so)); e("s_mov_b32 s%d, %d"%(sT5,so+31744))
        k.vmem("buffer_load_dwordx4 v%d, s[%d:%d], s%d offen lds"%(VOFFW,SRD_WQ,SRD_WQ+3,sT4),(side,item))
        k.vmem("buffer_load_dwordx4 v%d, s[%d:%d], s%d offen offset:1024 lds"%(VOFFW,SRD_WQ,SRD_WQ+3,sT5),(side,item))
    else:
        if side=='K':
            k.vmem("buffer_load_dwordx4 v%d, s[%d:%d], s%d offen nt lds"%(VOFFK0,SRD_K,SRD_K+3,sKOFF),(side,item))
            k.vmem("buffer_load_dwordx4 v%d, s[%d:%d], s%d offen offset:1024 nt lds"%(VOFFK1,SRD_K,SRD_K+3,sKOFF),(side,item))
            e("s_add_u32 s%d, s%d, 16384"%(sKOFF,sKOFF)); e("s_and_b32 s%d, s%d, 0x3ffff"%(sKOFF,sKOFF))
        else:
            k.vmem("buffer_load_dwordx4 v%d, s[%d:%d], s%d offen nt lds"%(VOFFV,SRD_V,SRD_V+3,sVOFF),(side,item))
            k.vmem("buffer_load_dwordx4 v%d, s[%d:%d], s%d offen offset:1024 nt lds"%(VOFFV,SRD_V,SRD_V+3,sVOFF),(side,item))
            e("s_add_u32 s%d, s%d, 16384"%(sVOFF,sVOFF)); e("s_and_b32 s%d, s%d, 0x3ffff"%(sVOFF,sVOFF))

if __name__=="__main__":
    from gen2 import gen_outproj
    hdr=open("cdna_kernels/%s.s.ref"%NAME).read().split("; Override launch")[0]
    out=hdr
    out+="; @launch kernel=attn_kernel grid=(512,1,1) block=(512,1,1) lds=163840\n"
    out+="; @launch kernel=outproj_kernel grid=(256,1,1) block=(256,1,1) lds=151552\n"
    out+='.amdgcn_target "amdgcn-amd-amdhsa--gfx950"\n.text\n'
    out+=".globl attn_kernel\n.p2align 8\n.type attn_kernel,@function\nattn_kernel:\n"
    out+=main()
    out+=".globl outproj_kernel\n.p2align 8\n.type outproj_kernel,@function\noutproj_kernel:\n"
    out+=gen_outproj()
    out+='.section .rodata,"a"\n'
    for nm,v,acc in (("attn_kernel",256,256),("outproj_kernel",400,256)):
        out+=""".p2align 6
.amdhsa_kernel %s
  .amdhsa_next_free_vgpr %d
  .amdhsa_next_free_sgpr 102
  .amdhsa_accum_offset %d
  .amdhsa_group_segment_fixed_size 0
  .amdhsa_kernarg_size 104
  .amdhsa_user_sgpr_count 2
  .amdhsa_user_sgpr_kernarg_segment_ptr 1
  .amdhsa_system_sgpr_workgroup_id_x 1
.end_amdhsa_kernel
"""%(nm,v,acc)
    open(sys.argv[1] if len(sys.argv)>1 else "cdna_kernels/%s.s"%NAME,"w").write(out)
```

```python
import sys, math
from asmlib import *

NAME="concat_heads__gqa_block_cached__gqa_block_cached__near_ridge"
C_SCALE = math.log2(math.e)/math.sqrt(128.0)
import struct
def f2u(x): return struct.unpack("<I",struct.pack("<f",x))[0]
T_RAW = 8.0/C_SCALE

LOOKAHEAD=5
import os
PK=0; LS2=232; FOLD=int(os.environ.get('FOLD','1')); DOT=int(os.environ.get('DOT','1')); MCB=230; sFLOOR=49; sONES=100; WARM1=int(os.environ.get('WARM1','0')); WARM2=int(os.environ.get('WARM2','1')); WARM2T=int(os.environ.get('WARM2T','1'))
STAMPS=bool(os.environ.get("STAMPS"))
if not FOLD: WARM2=0; DOT=0
stamp_ctr=[0]
def stamp(k):
    if not STAMPS: return lambda: None
    k.e("s_memtime s[60:61]")
    idx=stamp_ctr[0]; stamp_ctr[0]+=1
    def post(): k.e("v_writelane_b32 v255, s60, %d"%idx)
    return post

class K:
    def __init__(s):
        s.l=[]; s.vm=[]
        s.lg=0
        s.lg_done=0
        s.rare=False
    def e(s,t):
        s.l.append(I(t,s.rare)); return s.l[-1]
    def vmem(s,t,tag):
        s.e(t); s.vm.append(tag)
    def wait_vm(s,tags,extra=""):
        last=-1
        for i,t in enumerate(s.vm):
            if t in tags: last=i
        n=len(s.vm)-1-last
        s.vm=s.vm[last+1:]
        assert n<=63
        return n
    def ds(s,t):
        s.e(t); s.lg+=1; return s.lg
    def wait_lg(s,idx):
        if idx<=s.lg_done: return
        n=s.lg-idx
        assert n<=15,n
        s.e("s_waitcnt lgkmcnt(%d)"%n); s.lg_done=idx

def vr(a,n=1): return "v%d"%a if n==1 else "v[%d:%d]"%(a,a+n-1)

OACC=0; QF=64; S0=96; S1=128; PR=160; POOL=176; KADDR=208; VADDR=216
MREF=220; MC=221; LSUM=222; LS=223; ALPHA=224; VMX=225; TMP=226; TMP2=227; TMP3=228; TMP4=229
XF=64; XPOOL=64; XADDR=96; XD0=100; XD1=101; XWARM=102; XWD=104; POOLQ=208; WADDR=240; VOFFW=244; VOFFK0=245; VOFFK1=246; VOFFV=247
T0=248;T1=249;T2=250;T3=251;T4=252;T5=253;T6=254;T7=255
SRD_X=8; SRD_WQ=12; SRD_K=16; SRD_V=20; SRD_O=24; SRD_WO=28; SRD_WP=32
sW=36; sW2K=37; sKOFF=38; sVOFF=39; sC=40; sT=41; sFLAG=42; sLOOP=43; sHQ=44; sQB=45; sB=46; sHKV=47; sBLK=48
sT0=50; sT1=51; sT2=52; sT3=53; sT4=54;sT5=55
PTR=64

def gen_attn():
    k=K(); e=k.e
    e("s_cmp_ge_u32 s2, 512"); e("s_cbranch_scc1 Lattn_done")
    e("s_load_dwordx16 s[%d:%d], s[0:1], 0"%(PTR,PTR+15))
    e("s_load_dwordx4 s[%d:%d], s[0:1], 64"%(PTR+16,PTR+19))
    e("s_load_dwordx2 s[%d:%d], s[0:1], 96"%(PTR+20,PTR+21))
    e("s_and_b32 s%d, s2, 7"%sT0)
    e("s_lshr_b32 s%d, s2, 3"%sT1)
    e("s_lshr_b32 s%d, s%d, 2"%(sBLK,sT0))
    e("s_and_b32 s%d, s%d, 3"%(sT2,sT0))
    e("s_lshl_b32 s%d, s%d, 2"%(sT2,sT2))
    e("s_and_b32 s%d, s%d, 3"%(sT3,sT1))
    e("s_add_u32 s%d, s%d, s%d"%(sB,sT2,sT3))
    e("s_lshr_b32 s%d, s%d, 2"%(sHKV,sT1))
    e("v_lshrrev_b32 v%d, 6, v0"%T0)
    e("v_and_b32 v%d, 63, v0"%T1)
    e("v_readfirstlane_b32 s%d, v%d"%(sW,T0))
    if STAMPS:
        e("s_memtime s[62:63]"); stamp_ctr[0]+=1
    e("s_waitcnt lgkmcnt(0)")
    e("s_cmp_eq_u32 s%d, 0"%sBLK)
    for i in range(5):
        e("s_cselect_b32 s%d, s%d, s%d"%(90+2*i,PTR+2*i,PTR+10+2*i))
        e("s_cselect_b32 s%d, s%d, s%d"%(91+2*i,PTR+2*i+1,PTR+10+2*i+1))
    X,KP,VP,WQ,WO=90,92,94,96,98
    def srd(d,lo,hi,offs,size):
        if offs is None:
            e("s_mov_b32 s%d, s%d"%(d,lo)); e("s_and_b32 s%d, s%d, 0xffff"%(d+1,hi))
        else:
            e("s_add_u32 s%d, s%d, s%d"%(d,lo,offs)); e("s_addc_u32 s%d, s%d, 0"%(d+1,hi))
            e("s_and_b32 s%d, s%d, 0xffff"%(d+1,d+1))
        if isinstance(size,int): e("s_mov_b32 s%d, %d"%(d+2,size))
        else: e("s_mov_b32 s%d, s%d"%(d+2,size[0]))
        e("s_mov_b32 s%d, 0x20000"%(d+3))
    e("s_mul_i32 s%d, s%d, 147456"%(sT0,sB)); srd(SRD_X,X,X+1,sT0,147456)
    e("s_lshl_b32 s%d, s%d, 9"%(sT0,sHKV)); e("s_sub_u32 s%d, 4718592, s%d"%(sT1,sT0)); srd(SRD_WQ,WQ,WQ+1,sT0,(sT1,))
    e("s_lshl_b32 s%d, s%d, 4"%(sT0,sB)); e("s_add_u32 s%d, s%d, s%d"%(sT0,sT0,sHKV))
    e("s_lshl_b32 s%d, s%d, 18"%(sT1,sT0))
    srd(SRD_K,KP,KP+1,sT1,262144); srd(SRD_V,VP,VP+1,sT1,262144)
    e("s_lshl_b32 s%d, s%d, 24"%(sT1,sBLK)); srd(SRD_O,PTR+20,PTR+21,sT1,16777216)
    srd(SRD_WO,WO,WO+1,None,4718592)
    e("s_mul_i32 s%d, s%d, 4718592"%(sT1,sBLK)); e("s_add_u32 s%d, s%d, 33554432"%(sT1,sT1)); srd(SRD_WP,PTR+20,PTR+21,sT1,4718592)
    e("s_lshl_b32 s%d, s%d, 11"%(sW2K,sW))
    e("s_lshr_b32 s%d, s%d, 2"%(sHQ,sW))
    e("s_and_b32 s%d, s%d, 3"%(sQB,sW))
    e("s_mov_b32 s%d, 0x%08x"%(sC,f2u(C_SCALE))); e("s_mov_b32 s%d, 0x%08x"%(sT,f2u(T_RAW)))
    e("s_mov_b32 s%d, 0"%sFLAG)
    LANE=T1
    e("s_mov_b32 s59, s%d"%sT0)
    e("v_and_b32 v%d, 31, v%d"%(T4,LANE))
    e("v_lshrrev_b32 v%d, 5, v%d"%(T5,LANE))
    e("v_lshrrev_b32 v%d, 3, v%d"%(T6,LANE))
    e("s_lshl_b32 s%d, s%d, 4"%(sT4,sW))
    e("v_add_u32 v%d, s%d, v%d"%(T7,sT4,T6))
    e("v_mul_u32_u24 v%d, 1152, v%d"%(T7,T7))
    e("v_lshrrev_b32 v%d, 1, v%d"%(T6,T6))
    e("v_and_b32 v%d, 7, v%d"%(T0,LANE)); e("v_xor_b32 v%d, v%d, v%d"%(T0,T0,T6))
    e("v_lshl_add_u32 v%d, v%d, 4, v%d"%(XD0,T0,T7))
    e("v_xor_b32 v%d, 64, v%d"%(XD1,XD0))
    e("v_bfe_u32 v%d, v%d, 1, 3"%(T0,LANE)); e("v_xor_b32 v%d, v%d, v%d"%(T0,T0,T5)); e("v_lshlrev_b32 v%d, 4, v%d"%(T0,T0))
    e("v_lshl_add_u32 v%d, v%d, 7, v%d"%(T0,T4,T0))
    e("s_lshl_b32 s%d, s%d, 12"%(sT4,sQB)); e("s_add_u32 s%d, s%d, 131072"%(sT4,sT4))
    e("v_add_u32 v%d, s%d, v%d"%(XADDR,sT4,T0))
    for q in range(1,4): e("v_xor_b32 v%d, %d, v%d"%(XADDR+q,32*q,XADDR))
    e("s_mul_i32 s%d, s%d, 192"%(sT4,sW)); e("v_add_u32 v%d, s%d, v%d"%(XWARM,sT4,LANE)); e("v_lshlrev_b32 v%d, 7, v%d"%(XWARM,XWARM))
    e("v_lshrrev_b32 v%d, 4, v%d"%(T6,LANE))
    e("v_and_b32 v%d, 15, v%d"%(T7,LANE))
    e("s_lshl_b32 s%d, s%d, 3"%(sT4,sW))
    e("v_add_u32 v%d, s%d, v%d"%(T0,sT4,T6))
    e("v_and_b32 v%d, 15, v%d"%(T2,T0)); e("v_xor_b32 v%d, v%d, v%d"%(T2,T2,T7))
    e("v_lshlrev_b32 v%d, 4, v%d"%(T2,T2)); e("v_lshl_add_u32 v%d, v%d, 8, v%d"%(VOFFK0,T0,T2))
    e("v_xor_b32 v%d, 64, v%d"%(VOFFK1,VOFFK0))
    e("v_lshlrev_b32 v%d, 2, v%d"%(T2,T6)); e("v_xor_b32 v%d, v%d, v%d"%(T2,T2,T7)); e("v_lshlrev_b32 v%d, 4, v%d"%(T2,T2))
    e("v_lshl_add_u32 v%d, v%d, 8, v%d"%(VOFFV,T0,T2))
    e("v_lshl_add_u32 v%d, v%d, 13, v%d"%(VOFFW,T0,T2))
    e("v_bfe_u32 v%d, v%d, 2, 2"%(T0,LANE))
    e("v_bfe_u32 v%d, v%d, 4, 1"%(T2,LANE))
    e("v_and_b32 v%d, 1, v%d"%(T3,LANE))
    e("v_lshl_add_u32 v%d, v%d, 1, v%d"%(T2,T2,T3))
    e("v_lshlrev_b32 v%d, 2, v%d"%(T3,T0))
    e("v_xor_b32 v%d, v%d, v%d"%(T2,T2,T3))
    e("v_lshlrev_b32 v%d, 4, v%d"%(T2,T2))
    e("v_bfe_u32 v%d, v%d, 1, 1"%(T3,LANE))
    e("v_lshl_add_u32 v%d, v%d, 3, v%d"%(T2,T3,T2))
    e("v_lshl_add_u32 v%d, v%d, 3, v%d"%(T3,T5,T0))
    e("v_lshl_add_u32 v%d, v%d, 8, v%d"%(T2,T3,T2))
    e("s_lshl_b32 s%d, s%d, 16"%(sT4,sHQ))
    e("v_add_u32 v%d, s%d, v%d"%(WADDR,sT4,T2))
    for b in range(1,4): e("v_xor_b32 v%d, %d, v%d"%(WADDR+b,64*b,WADDR))
    def dma_item(side,item):
        st=item&3
        base=(0 if side=='K' else 65536)+st*16384
        e("s_add_u32 m0, s%d, %d"%(sW2K,base))
        if item<=8:
            so=item*64*8192+(0 if side=='K' else 256)
            e("s_mov_b32 s%d, %d"%(sT4,so)); e("s_mov_b32 s%d, %d"%(sT5,so+31744))
            k.vmem("buffer_load_dwordx4 v%d, s[%d:%d], s%d offen lds"%(VOFFW,SRD_WQ,SRD_WQ+3,sT4),(side,item))
            k.vmem("buffer_load_dwordx4 v%d, s[%d:%d], s%d offen offset:1024 lds"%(VOFFW,SRD_WQ,SRD_WQ+3,sT5),(side,item))
        else:
            if side=='K':
                k.vmem("buffer_load_dwordx4 v%d, s[%d:%d], s%d offen nt lds"%(VOFFK0,SRD_K,SRD_K+3,sKOFF),(side,item))
                k.vmem("buffer_load_dwordx4 v%d, s[%d:%d], s%d offen offset:1024 nt lds"%(VOFFK1,SRD_K,SRD_K+3,sKOFF),(side,item))
                e("s_add_u32 s%d, s%d, 16384"%(sKOFF,sKOFF)); e("s_and_b32 s%d, s%d, 0x3ffff"%(sKOFF,sKOFF))
            else:
                k.vmem("buffer_load_dwordx4 v%d, s[%d:%d], s%d offen nt lds"%(VOFFV,SRD_V,SRD_V+3,sVOFF),(side,item))
                k.vmem("buffer_load_dwordx4 v%d, s[%d:%d], s%d offen offset:1024 nt lds"%(VOFFV,SRD_V,SRD_V+3,sVOFF),(side,item))
                e("s_add_u32 s%d, s%d, 16384"%(sVOFF,sVOFF)); e("s_and_b32 s%d, s%d, 0x3ffff"%(sVOFF,sVOFF))
    e("s_lshr_b32 s%d, s2, 4"%sT4); e("s_add_u32 s%d, s%d, s2"%(sT4,sT4)); e("s_and_b32 s%d, s%d, 15"%(sT4,sT4))
    e("s_lshl_b32 s%d, s%d, 14"%(sKOFF,sT4)); e("s_mov_b32 s%d, s%d"%(sVOFF,sKOFF))
    _dma(k,'X',0); dma_item('K',0); dma_item('V',0)
    _dma(k,'X',1); dma_item('K',1); dma_item('V',1); dma_item('K',2)
    e("s_barrier")
    for i in range(3):
        e("s_mov_b32 s%d, %d"%(sT4,8192*i))
        k.vmem("buffer_load_dword v%d, v%d, s[%d:%d], s%d offen"%(XWD+i,XWARM,SRD_X,SRD_X+3,sT4),"warm")
    if WARM1:
        e("s_lshl_b32 s%d, s%d, 6"%(sT4,sW)); e("v_add_u32 v%d, s%d, v%d"%(T0,sT4,LANE))
        e("v_lshrrev_b32 v%d, 2, v%d"%(T0,T0)); e("v_lshlrev_b32 v%d, 13, v%d"%(T0,T0))
        e("v_and_b32 v%d, 3, v%d"%(T2,LANE)); e("v_lshl_add_u32 v%d, v%d, 7, v%d"%(T0,T2,T0))
        e("v_add_u32 v%d, %d, v%d"%(T0,192*8192,T0))
        for i in range(3):
            k.vmem("buffer_load_dword v%d, v%d, s[%d:%d], 0 offen"%(107+i,T0,SRD_WQ,SRD_WQ+3),"warm")
            if i<2: e("v_add_u32 v%d, %d, v%d"%(T0,1048576,T0))
    for i in range(64): e("v_mov_b32 v%d, 0"%(OACC+i))
    return k

def wo_pack_loads(k):
    e=k.e; LANE=T1
    e("s_mov_b32 s%d, s59"%sT0)
    e("v_lshrrev_b32 v%d, 5, v%d"%(T2,LANE))
    e("v_bfe_u32 v%d, v%d, 4, 1"%(T3,LANE))
    e("v_lshlrev_b32 v%d, 2, v%d"%(T2,T2))
    e("v_add_u32 v%d, v%d, v%d"%(T2,T2,T3))
    e("v_mul_u32_u24 v%d, 4608, v%d"%(T2,T2))
    e("v_and_b32 v%d, 15, v%d"%(T3,LANE))
    e("v_lshl_add_u32 v%d, v%d, 1, v%d"%(T2,T3,T2))
    e("v_add_u32 v%d, 9216, v%d"%(T3,T2))
    e("s_lshr_b32 s%d, s%d, 1"%(sT1,sT0))
    e("s_and_b32 s%d, s%d, 1"%(sT2,sT0)); e("s_mul_i32 s%d, s%d, 18"%(sT2,sT2))
    e("s_mul_i32 s%d, s%d, 36864"%(sT3,sT1))
    WPK=S0
    for f in range(3):
        e("s_add_u32 s%d, s%d, %d"%(sT4,sW,8*f)); e("s_min_u32 s%d, s%d, 17"%(sT4,sT4)); e("s_add_u32 s%d, s%d, s%d"%(sT4,sT4,sT2))
        e("s_lshl_b32 s%d, s%d, 5"%(sT5,sT4)); e("s_add_u32 s%d, s%d, s%d"%(sT5,sT5,sT3))
        for j in range(8):
            k.vmem("buffer_load_ushort v%d, v%d, s[%d:%d], s%d offen offset:%d"%(WPK+8*f+j, T3 if j>=4 else T2, SRD_WO,SRD_WO+3,sT5,(j&3)*1152),"wo")
        e("s_mul_i32 s%d, s%d, 36"%(56+f,sT1)); e("s_add_u32 s%d, s%d, s%d"%(56+f,56+f,sT4)); e("s_lshl_b32 s%d, s%d, 10"%(56+f,56+f))
def wo_pack_finish(k):
    e=k.e; LANE=T1; WPK=S0
    n=k.wait_vm(["wo"]); e("s_waitcnt vmcnt(%d)"%n)
    e("v_lshlrev_b32 v%d, 4, v%d"%(T0,LANE))
    for f in range(3):
        for j in range(4):
            e("v_lshl_or_b32 v%d, v%d, 16, v%d"%(WPK+8*f+j,WPK+8*f+2*j+1,WPK+8*f+2*j))
        k.vmem("buffer_store_dwordx4 %s, v%d, s[%d:%d], s%d offen"%(vr(WPK+8*f,4),T0,SRD_WP,SRD_WP+3,56+f),"wps")

class M:
    def __init__(s,text,reads,gate,pool):
        s.text=text; s.reads=reads; s.gate=gate; s.pool=pool; s.done=None

def emit_stream(k,ms,events,state):
    nr=state.get('nr',0)
    for i,m in enumerate(ms):
        for ev in events.get(i,[]):
            if callable(ev): ev()
            else: k.e(ev)
        while nr<len(ms) and nr<=i+LOOKAHEAD and ms[nr].gate<=state['period']:
            if ms[nr].done is None:
                d=0
                for r in ms[nr].reads: d=k.ds(r)
                ms[nr].done=d if ms[nr].reads else 0
            nr+=1
        assert m.done is not None,(i,m.text)
        if m.done: k.wait_lg(m.done)
        k.e(m.text)
    for ev in events.get(len(ms),[]):
        if callable(ev): ev()
        else: k.e(ev)
    state['nr']=nr

def spread(items,slots):
    out={}
    n=len(items); ns=len(slots)
    pos=0
    for si,sl in enumerate(slots):
        tgt=round(n*(si+1)/ns)
        out.setdefault(sl,[]).extend(items[pos:tgt]); pos=tgt
    return out

def main():
    k=gen_attn(); e=k.e
    LANE=T1
    pool_ctr=[0]
    def pslot(base):
        s=pool_ctr[0]%8; pool_ctr[0]+=1; return base+4*s
    state={'period':-1,'nr':0}
    def dma_item(side,item): return _dma(k,side,item)
    ms=[]; ev={}
    def top(p,need,dmas):
        def f():
            n=k.wait_vm(need)
            if STAMPS and p==0: e("v_writelane_b32 v255, s62, 0")
            ps=stamp(k) if p in (0,1,9) else (lambda:None)
            e("s_waitcnt vmcnt(%d) lgkmcnt(0)"%n); k.lg_done=k.lg
            ps()
            e("s_barrier")
            state['period']=p
            for sd,it in dmas: dma_item(sd,it)
        return f
    for p in range(9):
        st=p&3
        for s in range(4):
            for b in range(4):
                fr=pslot(POOLQ)
                off=st*16384+s*4096
                reads=["ds_read_b64_tr_b16 %s, v%d offset:%d"%(vr(fr,2),WADDR+b,off),
                       "ds_read_b64_tr_b16 %s, v%d offset:%d"%(vr(fr+2,2),WADDR+b,off+1024)]
                xr=XPOOL+((p&1)*4+s)*4
                if b==0: reads=["ds_read_b128 %s, v%d offset:%d"%(vr(xr,4),XADDR+s,(p&1)*16384)]+reads
                ms.append(M("v_mfma_f32_32x32x16_bf16 %s, %s, %s, %s"%(vr(OACC+16*b,16),vr(fr,4),vr(xr,4),vr(OACC+16*b,16)),reads,p,fr))
        idx=max(0,16*p-4)
        ev.setdefault(idx,[]).append(top(p,[('K',p),('V',p),('X',p)],([('X',p+1)] if 1<=p<=7 else [])+[('V',p+2),('K',p+3)]))
    ev.setdefault(16*9-4,[]).append(top(9,[('K',9)],[('V',11),('K',12)]))
    emit_stream(k,ms,ev,state)
    if FOLD:
        for i in range(64): e("v_mul_f32 v%d, s%d, v%d"%(OACC+i,sC,OACC+i))
    for i in range(32):
        e("v_cvt_pk_bf16_f32 v%d, v%d, v%d"%(QF+i,OACC+2*i,OACC+2*i+1))
    if FOLD:
        e("v_mov_b32 v254, v%d"%VOFFK0); globals()['VOFFK0']=254
        for i in range(16): e("v_mov_b32 v%d, 0"%(MCB+i))
        e("s_mov_b32 s%d, 0xff800000"%sT); e("s_mov_b32 s%d, 0xff7fffff"%sFLOOR)
    if DOT: e("s_mov_b32 s%d, 0x3f803f80"%sONES)
    import os
    if os.environ.get("DEBUGQ"):
        e("s_lshl_b32 s%d, s%d, 4"%(sT0,sB)); e("s_add_u32 s%d, s%d, s%d"%(sT0,sT0,sHKV)); e("s_lshl_b32 s%d, s%d, 3"%(sT0,sT0)); e("s_add_u32 s%d, s%d, s%d"%(sT0,sT0,sW)); e("s_lshl_b32 s%d, s%d, 13"%(sT0,sT0))
        e("v_lshlrev_b32 v%d, 4, v%d"%(T0,LANE))
        for T in range(8):
            e("buffer_store_dwordx4 %s, v%d, s[%d:%d], s%d offen"%(vr(QF+4*T,4),T0,SRD_O,SRD_O+3,sT0)); e("s_add_u32 s%d, s%d, 1024"%(sT0,sT0))
        e("s_waitcnt vmcnt(0)"); e("s_endpgm")
    for i in range(64): e("v_mov_b32 v%d, 0"%(OACC+i))
    e("v_and_b32 v%d, 31, v%d"%(T0,LANE)); e("v_lshrrev_b32 v%d, 5, v%d"%(T2,LANE))
    e("v_and_b32 v%d, 15, v%d"%(T3,LANE)); e("v_xor_b32 v%d, v%d, v%d"%(T3,T3,T2))
    e("v_lshlrev_b32 v%d, 4, v%d"%(T3,T3)); e("v_lshl_add_u32 v%d, v%d, 8, v%d"%(KADDR,T0,T3))
    for T in range(1,8): e("v_xor_b32 v%d, %d, v%d"%(KADDR+T,32*T,KADDR))
    e("v_bfe_u32 v%d, v%d, 2, 2"%(T0,LANE))
    e("v_bfe_u32 v%d, v%d, 4, 1"%(T3,LANE))
    e("v_bfe_u32 v%d, v%d, 1, 1"%(T4,LANE))
    e("v_lshl_add_u32 v%d, v%d, 1, v%d"%(T3,T3,T4))
    e("v_lshlrev_b32 v%d, 2, v%d"%(T4,T0)); e("v_xor_b32 v%d, v%d, v%d"%(T3,T3,T4)); e("v_lshlrev_b32 v%d, 4, v%d"%(T3,T3))
    e("v_and_b32 v%d, 1, v%d"%(T4,LANE)); e("v_lshl_add_u32 v%d, v%d, 3, v%d"%(T3,T4,T3))
    e("v_lshl_add_u32 v%d, v%d, 2, v%d"%(T4,T2,T0))
    e("v_lshl_add_u32 v%d, v%d, 8, v%d"%(T3,T4,T3))
    e("v_add_u32 v%d, 0x10000, v%d"%(VADDR,T3))
    for b in range(1,4): e("v_xor_b32 v%d, %d, v%d"%(VADDR+b,64*b,VADDR))
    e("v_mov_b32 v%d, 0xf149f2ca"%MREF); e("v_mov_b32 v%d, 0"%LSUM); e("v_mov_b32 v%d, 0"%MC)
    for i in range(16): e("v_mov_b32 v%d, 0"%(PR+i))
    for i in range(32): e("v_mov_b32 v%d, 0"%(POOL+i))

    lblc=[0]
    def Sreg(t): return S0 if (t&1)==0 else S1
    def qk_ms(t,p):
        st=(9+t)&3; out=[]
        for kb in range(2):
            for T in range(8):
                fr=pslot(POOL)
                out.append(M("v_mfma_f32_32x32x16_bf16 %s, %s, %s, %s"%(vr(Sreg(t)+16*kb,16),vr(fr,4),vr(QF+4*T,4),
                     ("0" if not FOLD else vr(MCB,16)) if T==0 else vr(Sreg(t)+16*kb,16)),
                     ["ds_read_b128 %s, v%d offset:%d"%(vr(fr,4),KADDR+T,st*16384+kb*8192)],p,fr))
        return out
    def pv_ms(t,p,ss):
        st=(9+t)&3; out=[]
        for s in ss:
            for b in range(4):
                fr=pslot(POOL); off=st*16384+s*4096
                out.append(M("v_mfma_f32_32x32x16_bf16 %s, %s, %s, %s"%(vr(OACC+16*b,16),vr(fr,4),vr(PR+4*s,4),vr(OACC+16*b,16)),
                    ["ds_read_b64_tr_b16 %s, v%d offset:%d"%(vr(fr,2),VADDR+b,off),
                     "ds_read_b64_tr_b16 %s, v%d offset:%d"%(vr(fr+2,2),VADDR+b,off+2048)],p,fr))
        return out
    def w1(t):
        S=Sreg(t); it=[]
        it.append("v_max3_f32 v%d, v%d, v%d, v%d"%(VMX,S,S+1,S+2))
        it.append("v_max3_f32 v%d, v%d, v%d, v%d"%(TMP,S+3,S+4,S+5))
        for i in range(6,32,4):
            it.append("v_max3_f32 v%d, v%d, v%d, v%d"%(VMX,VMX,S+i,S+i+1))
            if i+3<32: it.append("v_max3_f32 v%d, v%d, v%d, v%d"%(TMP,TMP,S+i+2,S+i+3))
        it.append("v_max_f32 v%d, v%d, v%d"%(VMX,VMX,TMP))
        it.append("v_mov_b32 v%d, v%d"%(TMP,VMX))
        it.append("v_permlane32_swap_b32 v%d, v%d"%(VMX,TMP))
        it.append("v_max_f32 v%d, v%d, v%d"%(VMX,VMX,TMP))
        if not FOLD: it.append("v_sub_f32 v%d, v%d, v%d"%(TMP,VMX,MREF))
        def dec():
            lblc[0]+=1; L="Ldec%d"%lblc[0]
            if FOLD:
                e("v_cmp_lt_f32 vcc, s%d, v%d"%(sT,VMX))
                e("s_cbranch_vccz %s"%L)
                k.rare=True
                e("v_max_f32 v%d, s%d, v%d"%(TMP,sFLOOR,VMX))
                e("v_sub_f32 v%d, 0, v%d"%(TMP2,TMP))
                e("v_min_f32 v%d, 0, v%d"%(TMP2,TMP2))
                e("v_exp_f32 v%d, v%d"%(ALPHA,TMP2))
                for i in range(32): e("v_sub_f32 v%d, v%d, v%d"%(S+i,S+i,TMP))
                for i in range(16): e("v_sub_f32 v%d, v%d, v%d"%(MCB+i,MCB+i,TMP))
                e("s_mov_b32 s%d, 1"%sFLAG)
                e("s_mov_b32 s%d, 0x41000000"%sT); e("s_mov_b32 s%d, 0"%sFLOOR)
                k.rare=False
                e(L+":")
                return
            e("v_cmp_lt_f32 vcc, s%d, v%d"%(sT,TMP))
            e("s_cbranch_vccz %s"%L)
            k.rare=True
            e("v_max_f32 v%d, v%d, v%d"%(TMP,MREF,VMX))
            e("v_sub_f32 v%d, v%d, v%d"%(TMP2,MREF,TMP))
            e("v_mul_f32 v%d, s%d, v%d"%(TMP2,sC,TMP2))
            e("v_exp_f32 v%d, v%d"%(ALPHA,TMP2))
            e("v_mov_b32 v%d, v%d"%(MREF,TMP))
            e("v_mul_f32 v%d, s%d, v%d"%(MC,sC,TMP))
            e("s_mov_b32 s%d, 1"%sFLAG)
            k.rare=False
            e(L+":")
        it.append(dec)
        return it
    def wexp(t,kb):
        S=Sreg(t)+16*kb; it=[]
        if PK:
            f=["v_pk_fma_f32 v[%d:%d], v[%d:%d], s[%d:%d], v[%d:%d] op_sel:[0,0,1] op_sel_hi:[1,0,1] neg_lo:[0,0,1] neg_hi:[0,0,1]"%(S+2*i,S+2*i+1,S+2*i,S+2*i+1,sC,sC+1,MREF,MREF+1) for i in range(8)]
            x=["v_exp_f32 v%d, v%d"%(S+i,S+i) for i in range(16)]
            a=[]
            for i in range(8):
                if kb==0 and i==0: a.append(None)
                elif kb==0 and i==1: a.append("v_pk_add_f32 v[%d:%d], v[%d:%d], v[%d:%d]"%(LS2,LS2+1,S,S+1,S+2,S+3))
                else: a.append("v_pk_add_f32 v[%d:%d], v[%d:%d], v[%d:%d]"%(LS2,LS2+1,LS2,LS2+1,S+2*i,S+2*i+1))
            seq=[]
            for i in range(8+3):
                if i<8: seq.append(f[i])
                if 0<=i-1<8: seq.append(x[2*(i-1)]); seq.append(x[2*(i-1)+1])
                if 0<=i-3<8 and a[i-3]: seq.append(a[i-3])
            return seq
        if FOLD:
            x=["v_exp_f32 v%d, v%d"%(S+i,S+i) for i in range(16)]
            if DOT: return x
            a=[]
            for i in range(16):
                if kb==0 and i==0: a.append("v_mov_b32 v%d, v%d"%(LS,S))
                else: a.append("v_add_f32 v%d, v%d, v%d"%(LS,LS,S+i))
            seq=[]
            for i in range(18):
                if i<16: seq.append(x[i])
                if 0<=i-2<16: seq.append(a[i-2])
            return seq
        for i in range(16):
            it.append("v_fma_f32 v%d, v%d, s%d, -v%d"%(S+i,S+i,sC,MC))
        f=it; x=["v_exp_f32 v%d, v%d"%(S+i,S+i) for i in range(16)]
        a=[]
        for i in range(16):
            if kb==0 and i==0: a.append("v_mov_b32 v%d, v%d"%(LS,S))
            else: a.append("v_add_f32 v%d, v%d, v%d"%(LS,LS,S+i))
        seq=[]
        for i in range(16+4):
            if i<16: seq.append(f[i])
            if 0<=i-2<16: seq.append(x[i-2])
            if 0<=i-4<16: seq.append(a[i-4])
        return seq
    def wcvt(t,kb):
        S=Sreg(t)+16*kb
        c=["v_cvt_pk_bf16_f32 v%d, v%d, v%d"%(PR+8*kb+i,S+2*i,S+2*i+1) for i in range(8)]
        if not DOT: return c
        d=["v_dot2_f32_bf16 v%d, v%d, s%d, v%d"%(LSUM,PR+8*kb+i,sONES,LSUM) for i in range(8)]
        seq=[]
        for i in range(9):
            if i<8: seq.append(c[i])
            if i>=1: seq.append(d[i-1])
        return seq
    def rescale():
        lblc[0]+=1; L="Lrs%d"%lblc[0]
        e("s_cmp_eq_u32 s%d, 0"%sFLAG)
        e("s_cbranch_scc1 %s"%L)
        k.rare=True
        e("s_nop 15")
        for i in range(64): e("v_mul_f32 v%d, v%d, v%d"%(OACC+i,ALPHA,OACC+i))
        e("v_mul_f32 v%d, v%d, v%d"%(LSUM,ALPHA,LSUM))
        e("s_mov_b32 s%d, 0"%sFLAG)
        e("s_nop 1")
        k.rare=False
        e(L+":")
    pool_ctr[0]=0
    st2={'period':9,'nr':0}
    m0=qk_ms(0,9)
    emit_stream(k,m0,{},st2)
    fb0=w1(0)+wexp(0,0); nb0=len(fb0)*12//16
    for x in fb0[:nb0]:
        x() if callable(x) else e(x)
    def iteration(t,tt,final):
        p=10+tt
        ms=[]; ev={}
        carried=iteration.carry
        ms+=carried
        doqk = not (final and tt==3)
        if doqk: ms+=qk_ms(tt+1,p)
        b0=len(ms)
        pv=pv_ms(tt,p,[0,1,2,3])
        ms+=pv[:12]
        iteration.carry=pv[12:]
        ms_all=ms+iteration.carry
        dm=[]
        if not final: dm=[('V',p+2),('K',p+3)]
        elif tt==0: dm=[('V',p+2)]
        def topf():
            need=[('K',p),('V',p-1)]
            n=k.wait_vm(need)
            ps=stamp(k) if (final or tt==0) else (lambda:None)
            e("s_waitcnt vmcnt(%d) lgkmcnt(0)"%n); k.lg_done=k.lg
            ps()
            e("s_barrier")
            for sd,it in dm: dma_item(sd,it)
            if final and tt==3: wo_pack_loads(k)
            if final and tt==WARM2T and WARM2:
                e("s_cmp_lt_u32 s%d, 8"%sHKV); e("s_cselect_b32 s%d, 4096, 0x40000000"%sT5)
                e("s_lshl_b32 s%d, s%d, 6"%(sT4,sW)); e("v_add_u32 v221, s%d, v%d"%(sT4,LANE))
                e("v_lshrrev_b32 v221, 2, v221"); e("v_lshlrev_b32 v221, 13, v221")
                e("v_and_b32 v248, 3, v%d"%LANE); e("v_lshl_add_u32 v221, v248, 7, v221")
                e("v_add_u32 v221, s%d, v221"%sT5)
                for i in range(5):
                    k.vmem("buffer_load_dword v%d, v221, s[%d:%d], 0 offen"%(220,SRD_WQ,SRD_WQ+3),"warm2")
                    if i<4: e("v_add_u32 v221, 1048576, v221")
        ev[0]=[topf]
        for i,l in spread(iteration.prev_late,[1,2,3,4]).items(): ev.setdefault(i,[]).extend(l)
        a_slots=list(range(5,b0)) if doqk else []
        fa=wexp(tt,1)[:0]
        lateA = wcvt(tt,0)+wexp(tt,1)+wcvt(tt,1)+(["v_add_f32 v%d, v%d, v%d"%(LSUM,LSUM,LS2),"v_add_f32 v%d, v%d, v%d"%(LSUM,LSUM,LS2+1)] if PK else ([] if DOT else ["v_add_f32 v%d, v%d, v%d"%(LSUM,LSUM,LS)]))
        if doqk:
            ev.setdefault(5,[]).append(rescale)
            for i,l in spread(lateA,list(range(5,b0))).items(): ev.setdefault(i,[]).extend(l)
        else:
            ev.setdefault(4,[]).append(rescale)
            ev.setdefault(4,[]).extend(lateA)
        if doqk:
            fb=w1(tt+1)+wexp(tt+1,0)
            nb=len(fb)*12//16
            for i,l in spread(fb[:nb],list(range(b0+1,len(ms)))+[len(ms)]).items(): ev.setdefault(i,[]).extend(l)
            iteration.late=fb[nb:]
        else:
            iteration.late=[]
        iteration.prev_late=iteration.late
        stt={'period':p,'nr':0}
        nr=0
        for i,m in enumerate(ms):
            for x in ev.get(i,[]): x() if callable(x) else e(x)
            while nr<len(ms_all) and nr<=i+LOOKAHEAD:
                mm=ms_all[nr]
                if mm.done is None:
                    d=0
                    for r in mm.reads: d=k.ds(r)
                    mm.done=d
                nr+=1
            if m.done: k.wait_lg(m.done)
            e(m.text)
        for x in ev.get(len(ms),[]): x() if callable(x) else e(x)
    dummy=[]
    for b in range(4):
        fr=pslot(POOL)
        mm=M("v_mfma_f32_32x32x16_bf16 %s, %s, %s, %s"%(vr(OACC+16*b,16),vr(fr,4),vr(PR+12,4),vr(OACC+16*b,16)),[],0,fr); mm.done=0
        dummy.append(mm)
    iteration.carry=dummy; iteration.prev_late=fb0[nb0:]
    for i in range(16): e("v_mov_b32 v%d, 0"%(POOL+i))
    e("s_mov_b32 s%d, 0"%sLOOP)
    pre_len=len(k.l)
    e("Lmain:")
    body_start=len(k.l)
    vm_entry=list(k.vm)
    prev_late_entry=iteration.prev_late
    for tt in range(4): iteration(None,tt,False)
    e("s_add_u32 s%d, s%d, 1"%(sLOOP,sLOOP)); e("s_cmp_lt_u32 s%d, 3"%sLOOP); e("s_cbranch_scc1 Lmain")
    body_end=len(k.l)
    rel=lambda l:[(a,b) if isinstance((a,b),tuple) else None for a,b in l]
    assert len(k.vm)==len(vm_entry),(k.vm,vm_entry)
    k.vm=list(vm_entry)
    for tt in range(4): iteration(None,tt,True)
    for m in iteration.carry:
        if m.done: k.wait_lg(m.done)
        e(m.text)
    e("v_mov_b32 v%d, v%d"%(TMP,LSUM))
    e("v_permlane32_swap_b32 v%d, v%d"%(LSUM,TMP))
    e("v_add_f32 v%d, v%d, v%d"%(LSUM,LSUM,TMP))
    e("v_rcp_f32 v%d, v%d"%(LSUM,LSUM))
    e("v_bfe_u32 v%d, v%d, 4, 1"%(T0,LANE)); e("v_lshrrev_b32 v%d, 5, v%d"%(T2,LANE)); e("v_and_b32 v%d, 15, v%d"%(T3,LANE))
    e("v_lshlrev_b32 v%d, 4, v%d"%(T3,T3)); e("v_lshl_add_u32 v%d, v%d, 8, v%d"%(T3,T2,T3)); e("v_lshl_add_u32 v%d, v%d, 10, v%d"%(T3,T0,T3))
    e("s_lshl_b32 s%d, s%d, 1"%(sT0,sB)); e("s_lshr_b32 s%d, s%d, 1"%(sT1,sQB)); e("s_add_u32 s%d, s%d, s%d"%(sT0,sT0,sT1)); e("s_lshl_b32 s%d, s%d, 19"%(sT0,sT0))
    e("s_lshl_b32 s%d, s%d, 1"%(sT1,sHKV)); e("s_add_u32 s%d, s%d, s%d"%(sT1,sT1,sHQ)); e("s_lshl_b32 s%d, s%d, 14"%(sT1,sT1)); e("s_add_u32 s%d, s%d, s%d"%(sT0,sT0,sT1))
    e("s_and_b32 s%d, s%d, 1"%(sT1,sQB)); e("s_lshl_b32 s%d, s%d, 11"%(sT1,sT1)); e("s_add_u32 s%d, s%d, s%d"%(sT0,sT0,sT1))
    for b in range(4):
        for i in range(16): e("v_mul_f32 v%d, v%d, v%d"%(OACC+16*b+i,LSUM,OACC+16*b+i))
        for i in range(8): e("v_cvt_pk_bf16_f32 v%d, v%d, v%d"%(S1+8*b+i,OACC+16*b+2*i,OACC+16*b+2*i+1))
        for t in range(2):
            k.vmem("buffer_store_dwordx4 %s, v%d, s[%d:%d], s%d offen offset:%d"%(vr(S1+8*b+4*t,4),T3,SRD_O,SRD_O+3,sT0,512*t),"o")
        if b<3: e("s_add_u32 s%d, s%d, 4096"%(sT0,sT0))
    wo_pack_finish(k)
    if STAMPS:
        ps=stamp(k); e("s_waitcnt vmcnt(0) lgkmcnt(0)"); ps()
        e("s_add_u32 s%d, s%d, 0x4000000"%(SRD_WP,PTR+20)); e("s_addc_u32 s%d, s%d, 0"%(SRD_WP+1,PTR+21)); e("s_and_b32 s%d, s%d, 0xffff"%(SRD_WP+1,SRD_WP+1))
        e("s_mov_b32 s%d, 0x1000000"%(SRD_WP+2))
        e("s_lshl_b32 s%d, s2, 3"%sT0); e("s_add_u32 s%d, s%d, s%d"%(sT0,sT0,sW)); e("s_lshl_b32 s%d, s%d, 8"%(sT0,sT0))
        e("v_lshlrev_b32 v%d, 2, v%d"%(T0,LANE))
        e("buffer_store_dword v255, v%d, s[%d:%d], s%d offen"%(T0,SRD_WP,SRD_WP+3,sT0))
    e("Lattn_done:"); e("s_endpgm")
    L=k.l
    fix_hazards(L)
    body=L[body_start:body_end]
    for _ in range(2):
        fix_hazards(body, ctx=L[body_end-40:body_end])
    fix_hazards(L)
    return render(L)

def _dma(k,side,item):
    e=k.e
    if side=='X':
        e("s_add_u32 m0, s%d, %d"%(sW2K,131072+(item&1)*16384))
        e("s_mov_b32 s%d, %d"%(sT4,item*128)); e("s_mov_b32 s%d, %d"%(sT5,item*128+8192))
        k.vmem("buffer_load_dwordx4 v%d, s[%d:%d], s%d offen lds"%(XD0,SRD_X,SRD_X+3,sT4),(side,item))
        k.vmem("buffer_load_dwordx4 v%d, s[%d:%d], s%d offen offset:1024 lds"%(XD1,SRD_X,SRD_X+3,sT5),(side,item))
        return
    st=item&3
    base=(0 if side=='K' else 65536)+st*16384
    e("s_add_u32 m0, s%d, %d"%(sW2K,base))
    if item<=8:
        so=item*64*8192+(0 if side=='K' else 256)
        e("s_mov_b32 s%d, %d"%(sT4,so)); e("s_mov_b32 s%d, %d"%(sT5,so+31744))
        k.vmem("buffer_load_dwordx4 v%d, s[%d:%d], s%d offen lds"%(VOFFW,SRD_WQ,SRD_WQ+3,sT4),(side,item))
        k.vmem("buffer_load_dwordx4 v%d, s[%d:%d], s%d offen offset:1024 lds"%(VOFFW,SRD_WQ,SRD_WQ+3,sT5),(side,item))
    else:
        if side=='K':
            k.vmem("buffer_load_dwordx4 v%d, s[%d:%d], s%d offen nt lds"%(VOFFK0,SRD_K,SRD_K+3,sKOFF),(side,item))
            k.vmem("buffer_load_dwordx4 v%d, s[%d:%d], s%d offen offset:1024 nt lds"%(VOFFK1,SRD_K,SRD_K+3,sKOFF),(side,item))
            e("s_add_u32 s%d, s%d, 16384"%(sKOFF,sKOFF)); e("s_and_b32 s%d, s%d, 0x3ffff"%(sKOFF,sKOFF))
        else:
            k.vmem("buffer_load_dwordx4 v%d, s[%d:%d], s%d offen nt lds"%(VOFFV,SRD_V,SRD_V+3,sVOFF),(side,item))
            k.vmem("buffer_load_dwordx4 v%d, s[%d:%d], s%d offen offset:1024 nt lds"%(VOFFV,SRD_V,SRD_V+3,sVOFF),(side,item))
            e("s_add_u32 s%d, s%d, 16384"%(sVOFF,sVOFF)); e("s_and_b32 s%d, s%d, 0x3ffff"%(sVOFF,sVOFF))

if __name__=="__main__":
    from gen2 import gen_outproj
    hdr=open("cdna_kernels/%s.s.ref"%NAME).read().split("; Override launch")[0]
    out=hdr
    out+="; @launch kernel=attn_kernel grid=(512,1,1) block=(512,1,1) lds=163840\n"
    out+="; @launch kernel=outproj_kernel grid=(256,1,1) block=(256,1,1) lds=151552\n"
    out+='.amdgcn_target "amdgcn-amd-amdhsa--gfx950"\n.text\n'
    out+=".globl attn_kernel\n.p2align 8\n.type attn_kernel,@function\nattn_kernel:\n"
    out+=main()
    out+=".globl outproj_kernel\n.p2align 8\n.type outproj_kernel,@function\noutproj_kernel:\n"
    out+=gen_outproj()
    out+='.section .rodata,"a"\n'
    for nm,v,acc in (("attn_kernel",256,256),("outproj_kernel",400,256)):
        out+=""".p2align 6
.amdhsa_kernel %s
  .amdhsa_next_free_vgpr %d
  .amdhsa_next_free_sgpr 102
  .amdhsa_accum_offset %d
  .amdhsa_group_segment_fixed_size 0
  .amdhsa_kernarg_size 104
  .amdhsa_user_sgpr_count 2
  .amdhsa_user_sgpr_kernarg_segment_ptr 1
  .amdhsa_system_sgpr_workgroup_id_x 1
.end_amdhsa_kernel
"""%(nm,v,acc)
    open(sys.argv[1] if len(sys.argv)>1 else "cdna_kernels/%s.s"%NAME,"w").write(out)
```

```python
from asmlib import *
def vr(a,n=1,p="v"): return "%s%d"%(p,a) if n==1 else "%s[%d:%d]"%(p,a,a+n-1)
def gen_outproj():
    L=[]
    def e(t): L.append(I(t)); return L[-1]
    SRD_O=8; SRD_WP=12; SRD_OUT=16
    sW=20; sBLK=21; sRG=22; sNG=23; sOO=24; sWO=25; sLOOP=26; sT0=28; sT1=29; sT2=30
    NST=4; BUF=16
    VL0=4; VL1=5; VL2=6
    e("s_cmp_ge_u32 s2, 256"); e("s_cbranch_scc1 Lop_done")
    e("s_load_dwordx2 s[4:5], s[0:1], 80")
    e("s_load_dwordx2 s[6:7], s[0:1], 96")
    e("s_and_b32 s%d, s2, 7"%sT0); e("s_lshr_b32 s%d, s2, 3"%sT1)
    e("s_lshr_b32 s%d, s%d, 2"%(sBLK,sT0))
    e("s_and_b32 s%d, s%d, 3"%(sT0,sT0)); e("s_lshl_b32 s%d, s%d, 3"%(sT0,sT0))
    e("s_lshr_b32 s%d, s%d, 2"%(sT2,sT1)); e("s_add_u32 s%d, s%d, s%d"%(sRG,sT0,sT2))
    e("s_and_b32 s%d, s%d, 3"%(sNG,sT1))
    e("v_lshrrev_b32 v1, 6, v0"); e("v_and_b32 v2, 63, v0")
    e("v_readfirstlane_b32 s%d, v1"%sW)
    e("s_waitcnt lgkmcnt(0)")
    e("s_lshl_b32 s%d, s%d, 24"%(sT0,sBLK))
    e("s_add_u32 s%d, s6, s%d"%(SRD_O,sT0)); e("s_addc_u32 s%d, s7, 0"%(SRD_O+1)); e("s_and_b32 s%d, s%d, 0xffff"%(SRD_O+1,SRD_O+1))
    e("s_mov_b32 s%d, 16777216"%(SRD_O+2)); e("s_mov_b32 s%d, 0x20000"%(SRD_O+3))
    e("s_mul_i32 s%d, s%d, 4718592"%(sT0,sBLK)); e("s_add_u32 s%d, s%d, 33554432"%(sT0,sT0))
    e("s_add_u32 s%d, s6, s%d"%(SRD_WP,sT0)); e("s_addc_u32 s%d, s7, 0"%(SRD_WP+1)); e("s_and_b32 s%d, s%d, 0xffff"%(SRD_WP+1,SRD_WP+1))
    e("s_mov_b32 s%d, 4718592"%(SRD_WP+2)); e("s_mov_b32 s%d, 0x20000"%(SRD_WP+3))
    e("s_mov_b32 s%d, s4"%SRD_OUT); e("s_and_b32 s%d, s5, 0xffff"%(SRD_OUT+1))
    e("s_mov_b32 s%d, 4718592"%(SRD_OUT+2)); e("s_mov_b32 s%d, 0x20000"%(SRD_OUT+3))
    e("s_lshl_b32 s%d, s%d, 7"%(sT0,sRG)); e("s_lshl_b32 s%d, s%d, 5"%(sT1,sW)); e("s_add_u32 s%d, s%d, s%d"%(sT0,sT0,sT1)); e("s_lshl_b32 s%d, s%d, 12"%(sOO,sT0))
    e("s_mul_i32 s%d, s%d, 36"%(sT0,sT1)); e("s_mul_i32 s%d, s%d, 9"%(sT2,sNG)); e("s_add_u32 s%d, s%d, s%d"%(sT0,sT0,sT2)); e("s_lshl_b32 s%d, s%d, 10"%(sWO,sT0))
    e("v_lshlrev_b32 v%d, 4, v2"%VL0); e("v_add_u32 v%d, 0x1000, v%d"%(VL1,VL0)); e("v_add_u32 v%d, 0x2000, v%d"%(VL2,VL0))
    def wreg(st,nt): return BUF+52*st+4*nt
    def oreg(st,rt): return BUF+52*st+36+4*rt
    def ld_w(st,nt):
        e("buffer_load_dwordx4 %s, v%d, s[%d:%d], s%d offen offset:%d"%(vr(wreg(st,nt),4),(VL0,VL1,VL2)[nt//4],SRD_WP,SRD_WP+3,sWO,(nt%4)*1024))
    def ld_o(st,rt):
        e("buffer_load_dwordx4 %s, v%d, s[%d:%d], s%d offen offset:%d"%(vr(oreg(st,rt),4),VL0,SRD_O,SRD_O+3,sOO,rt*1024))
    import os
    NOADV=os.environ.get("NOADV","")
    def adv():
        if NOADV=="1": return
        if NOADV=="2":
            e("s_add_u32 s%d, s%d, 4096"%(sOO,sOO)); return
        if NOADV=="3":
            e("s_add_u32 s%d, s%d, 36864"%(sWO,sWO)); return
        e("s_add_u32 s%d, s%d, 4096"%(sOO,sOO)); e("s_add_u32 s%d, s%d, 36864"%(sWO,sWO))
    for st in range(NST):
        for rt in range(4): ld_o(st,rt)
        for nt in range(9): ld_w(st,nt)
        adv()
    for i in range(144): e("v_accvgpr_write_b32 a%d, 0"%i)
    def step(st,pref,nout):
        e("s_waitcnt vmcnt(%d)"%nout)
        for nt in range(9):
            for rt in range(4):
                a=(nt*4+rt)*4
                e("v_mfma_f32_16x16x32_bf16 %s, %s, %s, %s"%(vr(a,4,"a"),vr(wreg(st,nt),4),vr(oreg(st,rt),4),vr(a,4,"a")))
            if pref: ld_w(st,nt)
        if pref:
            for rt in range(4): ld_o(st,rt)
            adv()
    e("s_mov_b32 s%d, 0"%sLOOP)
    e("Lop_loop:")
    bs=len(L)
    for st in range(NST): step(st,True,39)
    e("s_add_u32 s%d, s%d, 1"%(sLOOP,sLOOP)); e("s_cmp_lt_u32 s%d, 7"%sLOOP); e("s_cbranch_scc1 Lop_loop")
    be=len(L)
    for st in range(NST): step(st,False,39-13*st)
    e("v_and_b32 v8, 15, v2"); e("v_lshrrev_b32 v9, 4, v2")
    e("v_mul_u32_u24 v8, 592, v8"); e("v_lshl_add_u32 v8, v9, 4, v8")
    e("s_mul_i32 s%d, s%d, 37888"%(sT0,sW)); e("v_add_u32 v8, s%d, v8"%sT0)
    for nt in range(9):
        for rt in range(4):
            a=(nt*4+rt)*4
            e("ds_write_b128 v8, %s offset:%d"%(vr(a,4,"a"),rt*16*592+nt*64))
    e("s_waitcnt lgkmcnt(0)"); e("s_barrier")
    e("v_lshrrev_b32 v9, 2, v0"); e("v_and_b32 v10, 3, v0")
    e("v_mul_u32_u24 v11, 592, v9"); e("v_lshl_add_u32 v11, v10, 4, v11")
    e("s_lshl_b32 s%d, s%d, 6"%(sT0,sRG)); e("v_add_u32 v12, s%d, v9"%sT0); e("v_mul_u32_u24 v12, 2304, v12"); e("v_lshl_add_u32 v12, v10, 3, v12")
    e("s_mul_i32 s%d, s%d, 1152"%(sT0,sBLK)); e("s_mul_i32 s%d, s%d, 288"%(sT1,sNG)); e("s_add_u32 s%d, s%d, s%d"%(sT0,sT0,sT1))
    e("v_add_u32 v13, %d, v11"%(2*37888))
    for q in range(9):
        b=16+16*(q%3)
        e("ds_read_b128 %s, v11 offset:%d"%(vr(b,4),q*64))
        e("ds_read_b128 %s, v11 offset:%d"%(vr(b+4,4),q*64+37888))
        e("ds_read_b128 %s, v13 offset:%d"%(vr(b+8,4),q*64))
        e("ds_read_b128 %s, v13 offset:%d"%(vr(b+12,4),q*64+37888))
        e("s_waitcnt lgkmcnt(0)")
        for i in range(4):
            e("v_add_f32 v%d, v%d, v%d"%(b+i,b+i,b+4+i)); e("v_add_f32 v%d, v%d, v%d"%(b+8+i,b+8+i,b+12+i))
        for i in range(4): e("v_add_f32 v%d, v%d, v%d"%(b+i,b+i,b+8+i))
        e("v_cvt_pk_bf16_f32 v%d, v%d, v%d"%(b+4,b,b+1)); e("v_cvt_pk_bf16_f32 v%d, v%d, v%d"%(b+5,b+2,b+3))
        e("buffer_store_dwordx2 %s, v12, s[%d:%d], s%d offen offset:%d"%(vr(b+4,2),SRD_OUT,SRD_OUT+3,sT0,q*32))
    e("Lop_done:"); e("s_endpgm")
    fix_hazards(L)
    body=L[bs:be]
    fix_hazards(body,ctx=L[be-40:be]); fix_hazards(L)
    return render(L)
```

```python
import sys, math
from asmlib import *

NAME="concat_heads__gqa_block_cached__gqa_block_cached__near_ridge"
C_SCALE = math.log2(math.e)/math.sqrt(128.0)
import struct
def f2u(x): return struct.unpack("<I",struct.pack("<f",x))[0]
T_RAW = 8.0/C_SCALE

LOOKAHEAD=5
import os
PK=0; LS2=232; FOLD=int(os.environ.get('FOLD','1')); DOT=int(os.environ.get('DOT','0')); PF=int(os.environ.get('PF','0')); PFNT=os.environ.get('PFNT','nt'); PFAT=int(os.environ.get('PFAT','1')); PFG=int(os.environ.get('PFG','7')); MCB=230; sFLOOR=49; sONES=100; WARM1=int(os.environ.get('WARM1','0')); WARM2=int(os.environ.get('WARM2','1')); WARM2T=int(os.environ.get('WARM2T','1'))
STAMPS=bool(os.environ.get("STAMPS"))
if not FOLD: WARM2=0; DOT=0
stamp_ctr=[0]
def stamp(k):
    if not STAMPS: return lambda: None
    k.e("s_memtime s[60:61]")
    idx=stamp_ctr[0]; stamp_ctr[0]+=1
    def post(): k.e("v_writelane_b32 v255, s60, %d"%idx)
    return post

class K:
    def __init__(s):
        s.l=[]; s.vm=[]
        s.lg=0
        s.lg_done=0
        s.rare=False
    def e(s,t):
        s.l.append(I(t,s.rare)); return s.l[-1]
    def vmem(s,t,tag):
        s.e(t); s.vm.append(tag)
    def wait_vm(s,tags,extra=""):
        last=-1
        for i,t in enumerate(s.vm):
            if t in tags: last=i
        n=len(s.vm)-1-last
        s.vm=s.vm[last+1:]
        assert n<=63
        return n
    def ds(s,t):
        s.e(t); s.lg+=1; return s.lg
    def wait_lg(s,idx):
        if idx<=s.lg_done: return
        n=s.lg-idx
        assert n<=15,n
        s.e("s_waitcnt lgkmcnt(%d)"%n); s.lg_done=idx

def vr(a,n=1): return "v%d"%a if n==1 else "v[%d:%d]"%(a,a+n-1)

OACC=0; QF=64; S0=96; S1=128; PR=160; POOL=176; KADDR=208; VADDR=216
MREF=220; MC=221; LSUM=222; LS=223; ALPHA=224; VMX=225; TMP=226; TMP2=227; TMP3=228; TMP4=229
XF=64; XPOOL=64; XADDR=96; XD0=100; XD1=101; XWARM=102; XWD=104; POOLQ=208; WADDR=240; VOFFW=244; VOFFK0=245; VOFFK1=246; VOFFV=247
T0=248;T1=249;T2=250;T3=251;T4=252;T5=253;T6=254;T7=255
SRD_X=8; SRD_WQ=12; SRD_K=16; SRD_V=20; SRD_O=24; SRD_WO=28; SRD_WP=32
sW=36; sW2K=37; sKOFF=38; sVOFF=39; sC=40; sT=41; sFLAG=42; sLOOP=43; sHQ=44; sQB=45; sB=46; sHKV=47; sBLK=48
sU=4; sT0=50; sT1=51; sT2=52; sT3=53; sT4=54;sT5=55
PTR=64

def gen_attn():
    k=K(); e=k.e
    e("s_cmp_ge_u32 s2, 256"); e("s_cbranch_scc1 Lattn_done")
    e("s_load_dwordx16 s[%d:%d], s[0:1], 0"%(PTR,PTR+15))
    e("s_load_dwordx4 s[%d:%d], s[0:1], 64"%(PTR+16,PTR+19))
    e("s_load_dwordx2 s[%d:%d], s[0:1], 96"%(PTR+20,PTR+21))
    e("s_and_b32 s%d, s2, 7"%sT0)
    e("s_lshr_b32 s%d, s2, 3"%sT1)
    e("s_lshr_b32 s%d, s%d, 2"%(sBLK,sT0))
    e("s_and_b32 s%d, s%d, 3"%(sT2,sT0))
    e("s_lshl_b32 s%d, s%d, 2"%(sT2,sT2))
    e("s_and_b32 s%d, s%d, 3"%(sT3,sT1))
    e("s_add_u32 s%d, s%d, s%d"%(sB,sT2,sT3))
    e("s_lshr_b32 s%d, s%d, 2"%(sHKV,sT1))
    e("v_lshrrev_b32 v%d, 6, v0"%T0)
    e("v_and_b32 v%d, 63, v0"%T1)
    e("v_readfirstlane_b32 s%d, v%d"%(sW,T0))
    if STAMPS:
        e("s_memtime s[62:63]"); stamp_ctr[0]+=1; e("s_memrealtime s[100:101]")
    e("s_waitcnt lgkmcnt(0)")
    e("s_cmp_eq_u32 s%d, 0"%sBLK)
    for i in range(5):
        e("s_cselect_b32 s%d, s%d, s%d"%(90+2*i,PTR+2*i,PTR+10+2*i))
        e("s_cselect_b32 s%d, s%d, s%d"%(91+2*i,PTR+2*i+1,PTR+10+2*i+1))
    X,KP,VP,WQ,WO=90,92,94,96,98
    def srd(d,lo,hi,offs,size):
        if offs is None:
            e("s_mov_b32 s%d, s%d"%(d,lo)); e("s_and_b32 s%d, s%d, 0xffff"%(d+1,hi))
        else:
            e("s_add_u32 s%d, s%d, s%d"%(d,lo,offs)); e("s_addc_u32 s%d, s%d, 0"%(d+1,hi))
            e("s_and_b32 s%d, s%d, 0xffff"%(d+1,d+1))
        if isinstance(size,int): e("s_mov_b32 s%d, %d"%(d+2,size))
        else: e("s_mov_b32 s%d, s%d"%(d+2,size[0]))
        e("s_mov_b32 s%d, 0x20000"%(d+3))
    e("s_mul_i32 s%d, s%d, 147456"%(sT0,sB)); srd(SRD_X,X,X+1,sT0,147456)
    e("s_lshl_b32 s%d, s%d, 9"%(sT0,sHKV)); e("s_sub_u32 s%d, 4718592, s%d"%(sT1,sT0)); srd(SRD_WQ,WQ,WQ+1,sT0,(sT1,))
    e("s_lshl_b32 s%d, s%d, 24"%(sT1,sBLK)); srd(SRD_O,PTR+20,PTR+21,sT1,16777216)
    srd(SRD_WO,WO,WO+1,None,4718592)
    e("s_mul_i32 s%d, s%d, 4718592"%(sT1,sBLK)); e("s_add_u32 s%d, s%d, 33554432"%(sT1,sT1)); srd(SRD_WP,PTR+20,PTR+21,sT1,4718592)
    e("s_lshl_b32 s%d, s%d, 11"%(sW2K,sW))
    e("s_lshr_b32 s%d, s%d, 2"%(sHQ,sW))
    e("s_and_b32 s%d, s%d, 3"%(sQB,sW))
    e("s_mov_b32 s%d, 0x%08x"%(sC,f2u(C_SCALE))); e("s_mov_b32 s%d, 0x%08x"%(sT,f2u(T_RAW)))
    e("s_mov_b32 s%d, 0"%sU)
    e("Lunit:")
    e("s_lshl_b32 s%d, s%d, 4"%(sT0,sB)); e("s_add_u32 s%d, s%d, s%d"%(sT0,sT0,sHKV))
    e("s_lshl_b32 s%d, s%d, 18"%(sT1,sT0))
    srd(SRD_K,KP,KP+1,sT1,262144); srd(SRD_V,VP,VP+1,sT1,262144)
    e("s_mov_b32 s%d, 0"%sFLAG)
    LANE=T1
    e("s_mov_b32 s59, s%d"%sT0)
    e("v_and_b32 v%d, 31, v%d"%(T4,LANE))
    e("v_lshrrev_b32 v%d, 5, v%d"%(T5,LANE))
    e("v_lshrrev_b32 v%d, 3, v%d"%(T6,LANE))
    e("s_lshl_b32 s%d, s%d, 4"%(sT4,sW))
    e("v_add_u32 v%d, s%d, v%d"%(T7,sT4,T6))
    e("v_mul_u32_u24 v%d, 1152, v%d"%(T7,T7))
    e("v_lshrrev_b32 v%d, 1, v%d"%(T6,T6))
    e("v_and_b32 v%d, 7, v%d"%(T0,LANE)); e("v_xor_b32 v%d, v%d, v%d"%(T0,T0,T6))
    e("v_lshl_add_u32 v%d, v%d, 4, v%d"%(XD0,T0,T7))
    e("v_xor_b32 v%d, 64, v%d"%(XD1,XD0))
    e("v_bfe_u32 v%d, v%d, 1, 3"%(T0,LANE)); e("v_xor_b32 v%d, v%d, v%d"%(T0,T0,T5)); e("v_lshlrev_b32 v%d, 4, v%d"%(T0,T0))
    e("v_lshl_add_u32 v%d, v%d, 7, v%d"%(T0,T4,T0))
    e("s_lshl_b32 s%d, s%d, 12"%(sT4,sQB)); e("s_add_u32 s%d, s%d, 131072"%(sT4,sT4))
    e("v_add_u32 v%d, s%d, v%d"%(XADDR,sT4,T0))
    for q in range(1,4): e("v_xor_b32 v%d, %d, v%d"%(XADDR+q,32*q,XADDR))
    e("s_mul_i32 s%d, s%d, 192"%(sT4,sW)); e("v_add_u32 v%d, s%d, v%d"%(XWARM,sT4,LANE)); e("v_lshlrev_b32 v%d, 7, v%d"%(XWARM,XWARM))
    e("v_lshrrev_b32 v%d, 4, v%d"%(T6,LANE))
    e("v_and_b32 v%d, 15, v%d"%(T7,LANE))
    e("s_lshl_b32 s%d, s%d, 3"%(sT4,sW))
    e("v_add_u32 v%d, s%d, v%d"%(T0,sT4,T6))
    e("v_and_b32 v%d, 15, v%d"%(T2,T0)); e("v_xor_b32 v%d, v%d, v%d"%(T2,T2,T7))
    e("v_lshlrev_b32 v%d, 4, v%d"%(T2,T2)); e("v_lshl_add_u32 v%d, v%d, 8, v%d"%(VOFFK0,T0,T2))
    e("v_xor_b32 v%d, 64, v%d"%(VOFFK1,VOFFK0))
    e("v_lshlrev_b32 v%d, 2, v%d"%(T2,T6)); e("v_xor_b32 v%d, v%d, v%d"%(T2,T2,T7)); e("v_lshlrev_b32 v%d, 4, v%d"%(T2,T2))
    e("v_lshl_add_u32 v%d, v%d, 8, v%d"%(VOFFV,T0,T2))
    e("v_lshl_add_u32 v%d, v%d, 13, v%d"%(VOFFW,T0,T2))
    e("v_bfe_u32 v%d, v%d, 2, 2"%(T0,LANE))
    e("v_bfe_u32 v%d, v%d, 4, 1"%(T2,LANE))
    e("v_and_b32 v%d, 1, v%d"%(T3,LANE))
    e("v_lshl_add_u32 v%d, v%d, 1, v%d"%(T2,T2,T3))
    e("v_lshlrev_b32 v%d, 2, v%d"%(T3,T0))
    e("v_xor_b32 v%d, v%d, v%d"%(T2,T2,T3))
    e("v_lshlrev_b32 v%d, 4, v%d"%(T2,T2))
    e("v_bfe_u32 v%d, v%d, 1, 1"%(T3,LANE))
    e("v_lshl_add_u32 v%d, v%d, 3, v%d"%(T2,T3,T2))
    e("v_lshl_add_u32 v%d, v%d, 3, v%d"%(T3,T5,T0))
    e("v_lshl_add_u32 v%d, v%d, 8, v%d"%(T2,T3,T2))
    e("s_lshl_b32 s%d, s%d, 16"%(sT4,sHQ))
    e("v_add_u32 v%d, s%d, v%d"%(WADDR,sT4,T2))
    for b in range(1,4): e("v_xor_b32 v%d, %d, v%d"%(WADDR+b,64*b,WADDR))
    def dma_item(side,item):
        st=item&3
        base=(0 if side=='K' else 65536)+st*16384
        e("s_add_u32 m0, s%d, %d"%(sW2K,base))
        if item<=8:
            so=item*64*8192+(0 if side=='K' else 256)
            e("s_mov_b32 s%d, %d"%(sT4,so)); e("s_mov_b32 s%d, %d"%(sT5,so+31744))
            k.vmem("buffer_load_dwordx4 v%d, s[%d:%d], s%d offen lds"%(VOFFW,SRD_WQ,SRD_WQ+3,sT4),(side,item))
            k.vmem("buffer_load_dwordx4 v%d, s[%d:%d], s%d offen offset:1024 lds"%(VOFFW,SRD_WQ,SRD_WQ+3,sT5),(side,item))
        else:
            if side=='K':
                k.vmem("buffer_load_dwordx4 v%d, s[%d:%d], s%d offen nt lds"%(VOFFK0,SRD_K,SRD_K+3,sKOFF),(side,item))
                k.vmem("buffer_load_dwordx4 v%d, s[%d:%d], s%d offen offset:1024 nt lds"%(VOFFK1,SRD_K,SRD_K+3,sKOFF),(side,item))
                e("s_add_u32 s%d, s%d, 16384"%(sKOFF,sKOFF)); e("s_and_b32 s%d, s%d, 0x3ffff"%(sKOFF,sKOFF))
            else:
                k.vmem("buffer_load_dwordx4 v%d, s[%d:%d], s%d offen nt lds"%(VOFFV,SRD_V,SRD_V+3,sVOFF),(side,item))
                k.vmem("buffer_load_dwordx4 v%d, s[%d:%d], s%d offen offset:1024 nt lds"%(VOFFV,SRD_V,SRD_V+3,sVOFF),(side,item))
                e("s_add_u32 s%d, s%d, 16384"%(sVOFF,sVOFF)); e("s_and_b32 s%d, s%d, 0x3ffff"%(sVOFF,sVOFF))
    e("s_lshr_b32 s%d, s2, 4"%sT4); e("s_add_u32 s%d, s%d, s2"%(sT4,sT4)); e("s_and_b32 s%d, s%d, 15"%(sT4,sT4))
    e("s_lshl_b32 s%d, s%d, 14"%(sKOFF,sT4)); e("s_mov_b32 s%d, s%d"%(sVOFF,sKOFF))
    e("s_cmp_lg_u32 s%d, 0"%sU); e("s_cbranch_scc1 Lskipinit")
    _dma(k,'X',0); dma_item('K',0); dma_item('V',0)
    _dma(k,'X',1); dma_item('K',1); dma_item('V',1); dma_item('K',2)
    e("Lskipinit:")
    e("s_barrier")
    for i in range(3):
        e("s_mov_b32 s%d, %d"%(sT4,8192*i))
        k.vmem("buffer_load_dword v%d, v%d, s[%d:%d], s%d offen"%(XWD+i,XWARM,SRD_X,SRD_X+3,sT4),"warm")
    if WARM1:
        e("s_lshl_b32 s%d, s%d, 6"%(sT4,sW)); e("v_add_u32 v%d, s%d, v%d"%(T0,sT4,LANE))
        e("v_lshrrev_b32 v%d, 2, v%d"%(T0,T0)); e("v_lshlrev_b32 v%d, 13, v%d"%(T0,T0))
        e("v_and_b32 v%d, 3, v%d"%(T2,LANE)); e("v_lshl_add_u32 v%d, v%d, 7, v%d"%(T0,T2,T0))
        e("v_add_u32 v%d, %d, v%d"%(T0,192*8192,T0))
        for i in range(3):
            k.vmem("buffer_load_dword v%d, v%d, s[%d:%d], 0 offen"%(107+i,T0,SRD_WQ,SRD_WQ+3),"warm")
            if i<2: e("v_add_u32 v%d, %d, v%d"%(T0,1048576,T0))
    for i in range(64): e("v_mov_b32 v%d, 0"%(OACC+i))
    return k

def wo_pack_loads(k):
    e=k.e; LANE=T1
    e("s_mov_b32 s%d, s59"%sT0)
    e("v_lshrrev_b32 v%d, 5, v%d"%(T2,LANE))
    e("v_bfe_u32 v%d, v%d, 4, 1"%(T3,LANE))
    e("v_lshlrev_b32 v%d, 2, v%d"%(T2,T2))
    e("v_add_u32 v%d, v%d, v%d"%(T2,T2,T3))
    e("v_mul_u32_u24 v%d, 4608, v%d"%(T2,T2))
    e("v_and_b32 v%d, 15, v%d"%(T3,LANE))
    e("v_lshl_add_u32 v%d, v%d, 1, v%d"%(T2,T3,T2))
    e("v_add_u32 v%d, 9216, v%d"%(T3,T2))
    e("s_lshr_b32 s%d, s%d, 1"%(sT1,sT0))
    e("s_and_b32 s%d, s%d, 1"%(sT2,sT0)); e("s_mul_i32 s%d, s%d, 18"%(sT2,sT2))
    e("s_mul_i32 s%d, s%d, 36864"%(sT3,sT1))
    WPK=S0
    for f in range(3):
        e("s_add_u32 s%d, s%d, %d"%(sT4,sW,8*f)); e("s_min_u32 s%d, s%d, 17"%(sT4,sT4)); e("s_add_u32 s%d, s%d, s%d"%(sT4,sT4,sT2))
        e("s_lshl_b32 s%d, s%d, 5"%(sT5,sT4)); e("s_add_u32 s%d, s%d, s%d"%(sT5,sT5,sT3))
        for j in range(8):
            k.vmem("buffer_load_ushort v%d, v%d, s[%d:%d], s%d offen offset:%d"%(WPK+8*f+j, T3 if j>=4 else T2, SRD_WO,SRD_WO+3,sT5,(j&3)*1152),"wo")
        e("s_mul_i32 s%d, s%d, 36"%(56+f,sT1)); e("s_add_u32 s%d, s%d, s%d"%(56+f,56+f,sT4)); e("s_lshl_b32 s%d, s%d, 10"%(56+f,56+f))
def wo_pack_finish(k):
    e=k.e; LANE=T1; WPK=S0
    n=k.wait_vm(["wo"]); e("s_waitcnt vmcnt(%d)"%n)
    e("v_lshlrev_b32 v%d, 4, v%d"%(T0,LANE))
    for f in range(3):
        for j in range(4):
            e("v_lshl_or_b32 v%d, v%d, 16, v%d"%(WPK+8*f+j,WPK+8*f+2*j+1,WPK+8*f+2*j))
        k.vmem("buffer_store_dwordx4 %s, v%d, s[%d:%d], s%d offen"%(vr(WPK+8*f,4),T0,SRD_WP,SRD_WP+3,56+f),"wps")

class M:
    def __init__(s,text,reads,gate,pool):
        s.text=text; s.reads=reads; s.gate=gate; s.pool=pool; s.done=None

def emit_stream(k,ms,events,state):
    nr=state.get('nr',0)
    for i,m in enumerate(ms):
        for ev in events.get(i,[]):
            if callable(ev): ev()
            else: k.e(ev)
        while nr<len(ms) and nr<=i+LOOKAHEAD and ms[nr].gate<=state['period']:
            if ms[nr].done is None:
                d=0
                for r in ms[nr].reads: d=k.ds(r)
                ms[nr].done=d if ms[nr].reads else 0
            nr+=1
        assert m.done is not None,(i,m.text)
        if m.done: k.wait_lg(m.done)
        k.e(m.text)
    for ev in events.get(len(ms),[]):
        if callable(ev): ev()
        else: k.e(ev)
    state['nr']=nr

def spread(items,slots):
    out={}
    n=len(items); ns=len(slots)
    pos=0
    for si,sl in enumerate(slots):
        tgt=round(n*(si+1)/ns)
        out.setdefault(sl,[]).extend(items[pos:tgt]); pos=tgt
    return out

def main():
    k=gen_attn(); e=k.e
    LANE=T1
    pool_ctr=[0]
    def pslot(base):
        s=pool_ctr[0]%8; pool_ctr[0]+=1; return base+4*s
    state={'period':-1,'nr':0}
    def dma_item(side,item): return _dma(k,side,item)
    ms=[]; ev={}
    def top(p,need,dmas):
        def f():
            n=k.wait_vm(need)
            if STAMPS and p==0: e("v_writelane_b32 v255, s62, 0")
            ps=stamp(k) if p in (0,1,9) else (lambda:None)
            e("s_waitcnt vmcnt(%d) lgkmcnt(0)"%n); k.lg_done=k.lg
            ps()
            e("s_barrier")
            state['period']=p
            for sd,it in dmas: dma_item(sd,it)
            if PF and p==PFAT:
                n_ld=PF*(65536>>PFG)//512
                e("s_lshl_b32 s%d, s%d, 6"%(sT4,sW)); e("v_add_u32 v108, s%d, v%d"%(sT4,LANE)); e("v_lshlrev_b32 v108, %d, v108"%PFG)
                e("s_add_u32 s%d, s%d, 65536"%(sT4,sKOFF)); e("v_add_u32 v108, s%d, v108"%sT4)
                for i in range(n_ld):
                    e("v_and_b32 v109, 0x3ffff, v108")
                    k.vmem("buffer_load_dword v110, v109, s[%d:%d], 0 offen %s"%(SRD_K,SRD_K+3,PFNT),"pf")
                    k.vmem("buffer_load_dword v110, v109, s[%d:%d], 0 offen %s"%(SRD_V,SRD_V+3,PFNT),"pf")
                    if i<n_ld-1: e("v_add_u32 v108, %d, v108"%(512<<PFG))
        return f
    for p in range(9):
        st=p&3
        for s in range(4):
            for b in range(4):
                fr=pslot(POOLQ)
                off=st*16384+s*4096
                reads=["ds_read_b64_tr_b16 %s, v%d offset:%d"%(vr(fr,2),WADDR+b,off),
                       "ds_read_b64_tr_b16 %s, v%d offset:%d"%(vr(fr+2,2),WADDR+b,off+1024)]
                xr=XPOOL+((p&1)*4+s)*4
                if b==0: reads=["ds_read_b128 %s, v%d offset:%d"%(vr(xr,4),XADDR+s,(p&1)*16384)]+reads
                ms.append(M("v_mfma_f32_32x32x16_bf16 %s, %s, %s, %s"%(vr(OACC+16*b,16),vr(fr,4),vr(xr,4),vr(OACC+16*b,16)),reads,p,fr))
        idx=max(0,16*p-4)
        ev.setdefault(idx,[]).append(top(p,[('K',p),('V',p),('X',p)],([('X',p+1)] if 1<=p<=7 else [])+[('V',p+2),('K',p+3)]))
    ev.setdefault(16*9-4,[]).append(top(9,[('K',9)],[('V',11),('K',12)]))
    emit_stream(k,ms,ev,state)
    if FOLD:
        for i in range(64): e("v_mul_f32 v%d, s%d, v%d"%(OACC+i,sC,OACC+i))
    for i in range(32):
        e("v_cvt_pk_bf16_f32 v%d, v%d, v%d"%(QF+i,OACC+2*i,OACC+2*i+1))
    if FOLD:
        e("v_mov_b32 v254, v%d"%VOFFK0); globals()['VOFFK0']=254
        e("v_mov_b32 v228, v%d"%VOFFW); e("v_mov_b32 v229, v%d"%XD0); e("v_mov_b32 v253, v%d"%XD1)
        globals()['VOFFW']=228; globals()['XD0']=229; globals()['XD1']=253
        e("s_add_u32 s%d, s%d, 4096"%(SRD_WQ,SRD_WQ)); e("s_addc_u32 s%d, s%d, 0"%(SRD_WQ+1,SRD_WQ+1)); e("s_and_b32 s%d, s%d, 0xffff"%(SRD_WQ+1,SRD_WQ+1))
        e("s_sub_u32 s%d, s%d, 4096"%(SRD_WQ+2,SRD_WQ+2))
        e("s_cmp_lg_u32 s%d, 0"%sU); e("s_cselect_b32 s%d, 0, s%d"%(SRD_WQ+2,SRD_WQ+2))
        for i in range(16): e("v_mov_b32 v%d, 0"%(MCB+i))
        e("s_mov_b32 s%d, 0xff800000"%sT); e("s_mov_b32 s%d, 0xff7fffff"%sFLOOR)
    if DOT: e("s_mov_b32 s%d, 0x3f803f80"%sONES)
    import os
    if os.environ.get("DEBUGQ"):
        e("s_lshl_b32 s%d, s%d, 4"%(sT0,sB)); e("s_add_u32 s%d, s%d, s%d"%(sT0,sT0,sHKV)); e("s_lshl_b32 s%d, s%d, 3"%(sT0,sT0)); e("s_add_u32 s%d, s%d, s%d"%(sT0,sT0,sW)); e("s_lshl_b32 s%d, s%d, 13"%(sT0,sT0))
        e("v_lshlrev_b32 v%d, 4, v%d"%(T0,LANE))
        for T in range(8):
            e("buffer_store_dwordx4 %s, v%d, s[%d:%d], s%d offen"%(vr(QF+4*T,4),T0,SRD_O,SRD_O+3,sT0)); e("s_add_u32 s%d, s%d, 1024"%(sT0,sT0))
        e("s_waitcnt vmcnt(0)"); e("s_endpgm")
    for i in range(64): e("v_mov_b32 v%d, 0"%(OACC+i))
    e("v_and_b32 v%d, 31, v%d"%(T0,LANE)); e("v_lshrrev_b32 v%d, 5, v%d"%(T2,LANE))
    e("v_and_b32 v%d, 15, v%d"%(T3,LANE)); e("v_xor_b32 v%d, v%d, v%d"%(T3,T3,T2))
    e("v_lshlrev_b32 v%d, 4, v%d"%(T3,T3)); e("v_lshl_add_u32 v%d, v%d, 8, v%d"%(KADDR,T0,T3))
    for T in range(1,8): e("v_xor_b32 v%d, %d, v%d"%(KADDR+T,32*T,KADDR))
    e("v_bfe_u32 v%d, v%d, 2, 2"%(T0,LANE))
    e("v_bfe_u32 v%d, v%d, 4, 1"%(T3,LANE))
    e("v_bfe_u32 v%d, v%d, 1, 1"%(T4,LANE))
    e("v_lshl_add_u32 v%d, v%d, 1, v%d"%(T3,T3,T4))
    e("v_lshlrev_b32 v%d, 2, v%d"%(T4,T0)); e("v_xor_b32 v%d, v%d, v%d"%(T3,T3,T4)); e("v_lshlrev_b32 v%d, 4, v%d"%(T3,T3))
    e("v_and_b32 v%d, 1, v%d"%(T4,LANE)); e("v_lshl_add_u32 v%d, v%d, 3, v%d"%(T3,T4,T3))
    e("v_lshl_add_u32 v%d, v%d, 2, v%d"%(T4,T2,T0))
    e("v_lshl_add_u32 v%d, v%d, 8, v%d"%(T3,T4,T3))
    e("v_add_u32 v%d, 0x10000, v%d"%(VADDR,T3))
    for b in range(1,4): e("v_xor_b32 v%d, %d, v%d"%(VADDR+b,64*b,VADDR))
    e("v_mov_b32 v%d, 0xf149f2ca"%MREF); e("v_mov_b32 v%d, 0"%LSUM); e("v_mov_b32 v%d, 0"%MC)
    for i in range(16): e("v_mov_b32 v%d, 0"%(PR+i))
    for i in range(32): e("v_mov_b32 v%d, 0"%(POOL+i))

    lblc=[0]
    def Sreg(t): return S0 if (t&1)==0 else S1
    def qk_ms(t,p):
        st=(9+t)&3; out=[]
        for kb in range(2):
            for T in range(8):
                fr=pslot(POOL)
                out.append(M("v_mfma_f32_32x32x16_bf16 %s, %s, %s, %s"%(vr(Sreg(t)+16*kb,16),vr(fr,4),vr(QF+4*T,4),
                     ("0" if not FOLD else vr(MCB,16)) if T==0 else vr(Sreg(t)+16*kb,16)),
                     ["ds_read_b128 %s, v%d offset:%d"%(vr(fr,4),KADDR+T,st*16384+kb*8192)],p,fr))
        return out
    def pv_ms(t,p,ss):
        st=(9+t)&3; out=[]
        for s in ss:
            for b in range(4):
                fr=pslot(POOL); off=st*16384+s*4096
                out.append(M("v_mfma_f32_32x32x16_bf16 %s, %s, %s, %s"%(vr(OACC+16*b,16),vr(fr,4),vr(PR+4*s,4),vr(OACC+16*b,16)),
                    ["ds_read_b64_tr_b16 %s, v%d offset:%d"%(vr(fr,2),VADDR+b,off),
                     "ds_read_b64_tr_b16 %s, v%d offset:%d"%(vr(fr+2,2),VADDR+b,off+2048)],p,fr))
        return out
    def w1(t):
        S=Sreg(t); it=[]
        it.append("v_max3_f32 v%d, v%d, v%d, v%d"%(VMX,S,S+1,S+2))
        it.append("v_max3_f32 v%d, v%d, v%d, v%d"%(TMP,S+3,S+4,S+5))
        for i in range(6,32,4):
            it.append("v_max3_f32 v%d, v%d, v%d, v%d"%(VMX,VMX,S+i,S+i+1))
            if i+3<32: it.append("v_max3_f32 v%d, v%d, v%d, v%d"%(TMP,TMP,S+i+2,S+i+3))
        it.append("v_max_f32 v%d, v%d, v%d"%(VMX,VMX,TMP))
        it.append("v_mov_b32 v%d, v%d"%(TMP,VMX))
        it.append("v_permlane32_swap_b32 v%d, v%d"%(VMX,TMP))
        it.append("v_max_f32 v%d, v%d, v%d"%(VMX,VMX,TMP))
        if not FOLD: it.append("v_sub_f32 v%d, v%d, v%d"%(TMP,VMX,MREF))
        def dec():
            lblc[0]+=1; L="Ldec%d"%lblc[0]
            if FOLD:
                e("v_cmp_lt_f32 vcc, s%d, v%d"%(sT,VMX))
                e("s_cbranch_vccz %s"%L)
                k.rare=True
                e("v_max_f32 v%d, s%d, v%d"%(TMP,sFLOOR,VMX))
                e("v_sub_f32 v%d, 0, v%d"%(TMP2,TMP))
                e("v_min_f32 v%d, 0, v%d"%(TMP2,TMP2))
                e("v_exp_f32 v%d, v%d"%(ALPHA,TMP2))
                for i in range(32): e("v_sub_f32 v%d, v%d, v%d"%(S+i,S+i,TMP))
                for i in range(16): e("v_sub_f32 v%d, v%d, v%d"%(MCB+i,MCB+i,TMP))
                e("s_mov_b32 s%d, 1"%sFLAG)
                e("s_mov_b32 s%d, 0x41000000"%sT); e("s_mov_b32 s%d, 0"%sFLOOR)
                k.rare=False
                e(L+":")
                return
            e("v_cmp_lt_f32 vcc, s%d, v%d"%(sT,TMP))
            e("s_cbranch_vccz %s"%L)
            k.rare=True
            e("v_max_f32 v%d, v%d, v%d"%(TMP,MREF,VMX))
            e("v_sub_f32 v%d, v%d, v%d"%(TMP2,MREF,TMP))
            e("v_mul_f32 v%d, s%d, v%d"%(TMP2,sC,TMP2))
            e("v_exp_f32 v%d, v%d"%(ALPHA,TMP2))
            e("v_mov_b32 v%d, v%d"%(MREF,TMP))
            e("v_mul_f32 v%d, s%d, v%d"%(MC,sC,TMP))
            e("s_mov_b32 s%d, 1"%sFLAG)
            k.rare=False
            e(L+":")
        it.append(dec)
        return it
    def wexp(t,kb):
        S=Sreg(t)+16*kb; it=[]
        if PK:
            f=["v_pk_fma_f32 v[%d:%d], v[%d:%d], s[%d:%d], v[%d:%d] op_sel:[0,0,1] op_sel_hi:[1,0,1] neg_lo:[0,0,1] neg_hi:[0,0,1]"%(S+2*i,S+2*i+1,S+2*i,S+2*i+1,sC,sC+1,MREF,MREF+1) for i in range(8)]
            x=["v_exp_f32 v%d, v%d"%(S+i,S+i) for i in range(16)]
            a=[]
            for i in range(8):
                if kb==0 and i==0: a.append(None)
                elif kb==0 and i==1: a.append("v_pk_add_f32 v[%d:%d], v[%d:%d], v[%d:%d]"%(LS2,LS2+1,S,S+1,S+2,S+3))
                else: a.append("v_pk_add_f32 v[%d:%d], v[%d:%d], v[%d:%d]"%(LS2,LS2+1,LS2,LS2+1,S+2*i,S+2*i+1))
            seq=[]
            for i in range(8+3):
                if i<8: seq.append(f[i])
                if 0<=i-1<8: seq.append(x[2*(i-1)]); seq.append(x[2*(i-1)+1])
                if 0<=i-3<8 and a[i-3]: seq.append(a[i-3])
            return seq
        if FOLD:
            x=["v_exp_f32 v%d, v%d"%(S+i,S+i) for i in range(16)]
            if DOT: return x
            a=[]
            for i in range(16):
                if kb==0 and i==0: a.append("v_mov_b32 v%d, v%d"%(LS,S))
                else: a.append("v_add_f32 v%d, v%d, v%d"%(LS,LS,S+i))
            seq=[]
            for i in range(18):
                if i<16: seq.append(x[i])
                if 0<=i-2<16: seq.append(a[i-2])
            return seq
        for i in range(16):
            it.append("v_fma_f32 v%d, v%d, s%d, -v%d"%(S+i,S+i,sC,MC))
        f=it; x=["v_exp_f32 v%d, v%d"%(S+i,S+i) for i in range(16)]
        a=[]
        for i in range(16):
            if kb==0 and i==0: a.append("v_mov_b32 v%d, v%d"%(LS,S))
            else: a.append("v_add_f32 v%d, v%d, v%d"%(LS,LS,S+i))
        seq=[]
        for i in range(16+4):
            if i<16: seq.append(f[i])
            if 0<=i-2<16: seq.append(x[i-2])
            if 0<=i-4<16: seq.append(a[i-4])
        return seq
    def wcvt(t,kb):
        S=Sreg(t)+16*kb
        c=["v_cvt_pk_bf16_f32 v%d, v%d, v%d"%(PR+8*kb+i,S+2*i,S+2*i+1) for i in range(8)]
        if not DOT: return c
        d=["v_dot2_f32_bf16 v%d, v%d, s%d, v%d"%(LSUM,PR+8*kb+i,sONES,LSUM) for i in range(8)]
        seq=[]
        for i in range(9):
            if i<8: seq.append(c[i])
            if i>=1: seq.append(d[i-1])
        return seq
    def rescale():
        lblc[0]+=1; L="Lrs%d"%lblc[0]
        e("s_cmp_eq_u32 s%d, 0"%sFLAG)
        e("s_cbranch_scc1 %s"%L)
        k.rare=True
        e("s_nop 15")
        for i in range(64): e("v_mul_f32 v%d, v%d, v%d"%(OACC+i,ALPHA,OACC+i))
        e("v_mul_f32 v%d, v%d, v%d"%(LSUM,ALPHA,LSUM))
        e("s_mov_b32 s%d, 0"%sFLAG)
        e("s_nop 1")
        k.rare=False
        e(L+":")
    pool_ctr[0]=0
    st2={'period':9,'nr':0}
    m0=qk_ms(0,9)
    emit_stream(k,m0,{},st2)
    fb0=w1(0)+wexp(0,0); nb0=len(fb0)*12//16
    for x in fb0[:nb0]:
        x() if callable(x) else e(x)
    def iteration(t,tt,final):
        p=10+tt
        ms=[]; ev={}
        carried=iteration.carry
        ms+=carried
        doqk = not (final and tt==3)
        if doqk: ms+=qk_ms(tt+1,p)
        b0=len(ms)
        pv=pv_ms(tt,p,[0,1,2,3])
        ms+=pv[:12]
        iteration.carry=pv[12:]
        ms_all=ms+iteration.carry
        dm=[]
        if not final: dm=[('V',p+2),('K',p+3)]
        else: dm=[[('V',p+2),('K',1)],[('V',1),('K',2)],[('X',0),('X',1)],[('K',0)]][tt]
        def topf():
            need=[('K',p),('V',p-1)]
            n=k.wait_vm(need)
            ps=stamp(k) if (final or tt==0) else (lambda:None)
            e("s_waitcnt vmcnt(%d) lgkmcnt(0)"%n); k.lg_done=k.lg
            ps()
            e("s_barrier")
            for sd,it in dm: dma_item(sd,it)
            if final and tt==3: wo_pack_loads(k)
            if final and tt==WARM2T and WARM2:
                e("s_mov_b32 s%d, 0"%sT5)
                e("s_and_b32 s%d, s%d, 3"%(sT4,sB)); e("s_mul_i32 s%d, s%d, 576"%(sT4,sT4))
                e("s_mul_i32 s%d, s%d, 72"%(sT3,sW)); e("s_add_u32 s%d, s%d, s%d"%(sT4,sT4,sT3))
                for i in range(2):
                    e("v_add_u32 v221, s%d, v%d"%(sT4,LANE))
                    if i: e("v_add_u32 v221, 64, v221")
                    e("v_and_b32 v248, 3, v221")
                    e("v_lshrrev_b32 v221, 2, v221"); e("v_lshlrev_b32 v221, 13, v221")
                    e("v_lshl_add_u32 v221, v248, 7, v221")
                    e("v_add_u32 v221, s%d, v221"%sT5)
                    if i:
                        e("v_cmp_lt_u32 vcc, 7, v%d"%LANE)
                        e("v_cndmask_b32 v221, v221, v254, vcc") if False else e("v_mov_b32 v248, 0x40000000")
                        e("v_cndmask_b32 v221, v221, v248, vcc")
                    k.vmem("buffer_load_dword v220, v221, s[%d:%d], 0 offen"%(SRD_WQ,SRD_WQ+3),"warm2")
        ev[0]=[topf]
        for i,l in spread(iteration.prev_late,[1,2,3,4]).items(): ev.setdefault(i,[]).extend(l)
        a_slots=list(range(5,b0)) if doqk else []
        fa=wexp(tt,1)[:0]
        lateA = wcvt(tt,0)+wexp(tt,1)+wcvt(tt,1)+(["v_add_f32 v%d, v%d, v%d"%(LSUM,LSUM,LS2),"v_add_f32 v%d, v%d, v%d"%(LSUM,LSUM,LS2+1)] if PK else ([] if DOT else ["v_add_f32 v%d, v%d, v%d"%(LSUM,LSUM,LS)]))
        if doqk:
            ev.setdefault(5,[]).append(rescale)
            for i,l in spread(lateA,list(range(5,b0))).items(): ev.setdefault(i,[]).extend(l)
        else:
            ev.setdefault(4,[]).append(rescale)
            ev.setdefault(4,[]).extend(lateA)
        if doqk:
            fb=w1(tt+1)+wexp(tt+1,0)
            nb=len(fb)*12//16
            for i,l in spread(fb[:nb],list(range(b0+1,len(ms)))+[len(ms)]).items(): ev.setdefault(i,[]).extend(l)
            iteration.late=fb[nb:]
        else:
            iteration.late=[]
        iteration.prev_late=iteration.late
        stt={'period':p,'nr':0}
        nr=0
        for i,m in enumerate(ms):
            for x in ev.get(i,[]): x() if callable(x) else e(x)
            while nr<len(ms_all) and nr<=i+LOOKAHEAD:
                mm=ms_all[nr]
                if mm.done is None:
                    d=0
                    for r in mm.reads: d=k.ds(r)
                    mm.done=d
                nr+=1
            if m.done: k.wait_lg(m.done)
            e(m.text)
        for x in ev.get(len(ms),[]): x() if callable(x) else e(x)
    dummy=[]
    for b in range(4):
        fr=pslot(POOL)
        mm=M("v_mfma_f32_32x32x16_bf16 %s, %s, %s, %s"%(vr(OACC+16*b,16),vr(fr,4),vr(PR+12,4),vr(OACC+16*b,16)),[],0,fr); mm.done=0
        dummy.append(mm)
    iteration.carry=dummy; iteration.prev_late=fb0[nb0:]
    for i in range(16): e("v_mov_b32 v%d, 0"%(POOL+i))
    e("s_mov_b32 s%d, 0"%sLOOP)
    pre_len=len(k.l)
    e("Lmain:")
    body_start=len(k.l)
    vm_entry=list(k.vm)
    prev_late_entry=iteration.prev_late
    for tt in range(4): iteration(None,tt,False)
    e("s_add_u32 s%d, s%d, 1"%(sLOOP,sLOOP)); e("s_cmp_lt_u32 s%d, 3"%sLOOP); e("s_cbranch_scc1 Lmain")
    body_end=len(k.l)
    rel=lambda l:[(a,b) if isinstance((a,b),tuple) else None for a,b in l]
    assert len(k.vm)==len(vm_entry),(k.vm,vm_entry)
    k.vm=list(vm_entry)
    for tt in range(4): iteration(None,tt,True)
    for m in iteration.carry:
        if m.done: k.wait_lg(m.done)
        e(m.text)
    e("s_waitcnt lgkmcnt(0)"); k.lg_done=k.lg; e("s_barrier"); dma_item('V',0)
    e("v_mov_b32 v%d, v%d"%(TMP,LSUM))
    e("v_permlane32_swap_b32 v%d, v%d"%(LSUM,TMP))
    e("v_add_f32 v%d, v%d, v%d"%(LSUM,LSUM,TMP))
    e("v_rcp_f32 v%d, v%d"%(LSUM,LSUM))
    e("v_bfe_u32 v%d, v%d, 4, 1"%(T0,LANE)); e("v_lshrrev_b32 v%d, 5, v%d"%(T2,LANE)); e("v_and_b32 v%d, 15, v%d"%(T3,LANE))
    e("v_lshlrev_b32 v%d, 4, v%d"%(T3,T3)); e("v_lshl_add_u32 v%d, v%d, 8, v%d"%(T3,T2,T3)); e("v_lshl_add_u32 v%d, v%d, 10, v%d"%(T3,T0,T3))
    e("s_lshl_b32 s%d, s%d, 1"%(sT0,sB)); e("s_lshr_b32 s%d, s%d, 1"%(sT1,sQB)); e("s_add_u32 s%d, s%d, s%d"%(sT0,sT0,sT1)); e("s_lshl_b32 s%d, s%d, 19"%(sT0,sT0))
    e("s_lshl_b32 s%d, s%d, 1"%(sT1,sHKV)); e("s_add_u32 s%d, s%d, s%d"%(sT1,sT1,sHQ)); e("s_lshl_b32 s%d, s%d, 14"%(sT1,sT1)); e("s_add_u32 s%d, s%d, s%d"%(sT0,sT0,sT1))
    e("s_and_b32 s%d, s%d, 1"%(sT1,sQB)); e("s_lshl_b32 s%d, s%d, 11"%(sT1,sT1)); e("s_add_u32 s%d, s%d, s%d"%(sT0,sT0,sT1))
    for b in range(4):
        for i in range(16): e("v_mul_f32 v%d, v%d, v%d"%(OACC+16*b+i,LSUM,OACC+16*b+i))
        for i in range(8): e("v_cvt_pk_bf16_f32 v%d, v%d, v%d"%(S1+8*b+i,OACC+16*b+2*i,OACC+16*b+2*i+1))
    e("s_waitcnt vmcnt(0)"); k.vm=[]
    for b in range(4):
        for t in range(2):
            k.vmem("buffer_store_dwordx4 %s, v%d, s[%d:%d], s%d offen offset:%d"%(vr(S1+8*b+4*t,4),T3,SRD_O,SRD_O+3,sT0,512*t),"o")
        if b<3: e("s_add_u32 s%d, s%d, 4096"%(sT0,sT0))
    wo_pack_finish(k)
    if STAMPS:
        e("s_cmp_lg_u32 s%d, 1"%sU); e("s_cbranch_scc1 Lnost")
        ps=stamp(k); e("s_waitcnt vmcnt(0) lgkmcnt(0)"); ps()
        e("s_memrealtime s[60:61]"); e("s_waitcnt lgkmcnt(0)"); e("v_writelane_b32 v255, s60, 63"); e("v_writelane_b32 v255, s100, 62")
        e("s_add_u32 s%d, s%d, 0x4000000"%(SRD_WP,PTR+20)); e("s_addc_u32 s%d, s%d, 0"%(SRD_WP+1,PTR+21)); e("s_and_b32 s%d, s%d, 0xffff"%(SRD_WP+1,SRD_WP+1))
        e("s_mov_b32 s%d, 0x1000000"%(SRD_WP+2))
        e("s_lshl_b32 s%d, s2, 3"%sT0); e("s_add_u32 s%d, s%d, s%d"%(sT0,sT0,sW)); e("s_lshl_b32 s%d, s%d, 8"%(sT0,sT0))
        e("v_lshlrev_b32 v%d, 2, v%d"%(T0,LANE))
        e("buffer_store_dword v255, v%d, s[%d:%d], s%d offen"%(T0,SRD_WP,SRD_WP+3,sT0))
        e("Lnost:")
    e("s_add_u32 s%d, s%d, 8"%(sHKV,sHKV)); e("s_add_u32 s%d, s%d, 1"%(sU,sU)); e("s_cmp_lt_u32 s%d, 2"%sU); e("s_cbranch_scc1 Lunit")
    e("Lattn_done:"); e("s_endpgm")
    L=k.l
    fix_hazards(L)
    body=L[body_start:body_end]
    for _ in range(2):
        fix_hazards(body, ctx=L[body_end-40:body_end])
    fix_hazards(L)
    return render(L)

def _dma(k,side,item):
    e=k.e
    if side=='X':
        e("s_add_u32 m0, s%d, %d"%(sW2K,131072+(item&1)*16384))
        e("s_mov_b32 s%d, %d"%(sT4,item*128)); e("s_mov_b32 s%d, %d"%(sT5,item*128+8192))
        k.vmem("buffer_load_dwordx4 v%d, s[%d:%d], s%d offen lds"%(XD0,SRD_X,SRD_X+3,sT4),(side,item))
        k.vmem("buffer_load_dwordx4 v%d, s[%d:%d], s%d offen offset:1024 lds"%(XD1,SRD_X,SRD_X+3,sT5),(side,item))
        return
    st=item&3
    base=(0 if side=='K' else 65536)+st*16384
    e("s_add_u32 m0, s%d, %d"%(sW2K,base))
    if item<=8:
        so=item*64*8192+(0 if side=='K' else 256)
        e("s_mov_b32 s%d, %d"%(sT4,so)); e("s_mov_b32 s%d, %d"%(sT5,so+31744))
        k.vmem("buffer_load_dwordx4 v%d, s[%d:%d], s%d offen lds"%(VOFFW,SRD_WQ,SRD_WQ+3,sT4),(side,item))
        k.vmem("buffer_load_dwordx4 v%d, s[%d:%d], s%d offen offset:1024 lds"%(VOFFW,SRD_WQ,SRD_WQ+3,sT5),(side,item))
    else:
        if side=='K':
            k.vmem("buffer_load_dwordx4 v%d, s[%d:%d], s%d offen nt lds"%(VOFFK0,SRD_K,SRD_K+3,sKOFF),(side,item))
            k.vmem("buffer_load_dwordx4 v%d, s[%d:%d], s%d offen offset:1024 nt lds"%(VOFFK1,SRD_K,SRD_K+3,sKOFF),(side,item))
            e("s_add_u32 s%d, s%d, 16384"%(sKOFF,sKOFF)); e("s_and_b32 s%d, s%d, 0x3ffff"%(sKOFF,sKOFF))
        else:
            k.vmem("buffer_load_dwordx4 v%d, s[%d:%d], s%d offen nt lds"%(VOFFV,SRD_V,SRD_V+3,sVOFF),(side,item))
            k.vmem("buffer_load_dwordx4 v%d, s[%d:%d], s%d offen offset:1024 nt lds"%(VOFFV,SRD_V,SRD_V+3,sVOFF),(side,item))
            e("s_add_u32 s%d, s%d, 16384"%(sVOFF,sVOFF)); e("s_and_b32 s%d, s%d, 0x3ffff"%(sVOFF,sVOFF))

if __name__=="__main__":
    from gen2 import gen_outproj
    hdr=open("cdna_kernels/%s.s.ref"%NAME).read().split("; Override launch")[0]
    out=hdr
    out+="; @launch kernel=attn_kernel grid=(256,1,1) block=(512,1,1) lds=163840\n"
    out+="; @launch kernel=outproj_kernel grid=(256,1,1) block=(256,1,1) lds=151552\n"
    out+='.amdgcn_target "amdgcn-amd-amdhsa--gfx950"\n.text\n'
    out+=".globl attn_kernel\n.p2align 8\n.type attn_kernel,@function\nattn_kernel:\n"
    out+=main()
    out+=".globl outproj_kernel\n.p2align 8\n.type outproj_kernel,@function\noutproj_kernel:\n"
    out+=gen_outproj()
    out+='.section .rodata,"a"\n'
    for nm,v,acc in (("attn_kernel",256,256),("outproj_kernel",400,256)):
        out+=""".p2align 6
.amdhsa_kernel %s
  .amdhsa_next_free_vgpr %d
  .amdhsa_next_free_sgpr 102
  .amdhsa_accum_offset %d
  .amdhsa_group_segment_fixed_size 0
  .amdhsa_kernarg_size 104
  .amdhsa_user_sgpr_count 2
  .amdhsa_user_sgpr_kernarg_segment_ptr 1
  .amdhsa_system_sgpr_workgroup_id_x 1
.end_amdhsa_kernel
"""%(nm,v,acc)
    open(sys.argv[1] if len(sys.argv)>1 else "cdna_kernels/%s.s"%NAME,"w").write(out)
```
